```python
import torch

def _softmax(x, axis=-1):
    return torch.softmax(x, dim=axis)
def _gelu(x):
    return torch.nn.functional.gelu(x, approximate="tanh")
def _silu(x):
    return torch.nn.functional.silu(x)
def _sigmoid(x):
    return torch.sigmoid(x)
def _layernorm(x, axis=-1, eps=1e-5):
    m = x.mean(dim=axis, keepdim=True)
    v = x.var(dim=axis, keepdim=True, unbiased=False)
    return (x - m) / torch.sqrt(v + eps)
def _scatter_add(tgt, idx, src, axis=0):
    return tgt.clone().index_add_(axis, idx, src)
def _segment_sum(src, seg, n):
    out = torch.zeros((n,) + src.shape[1:], dtype=src.dtype)
    return out.index_add_(0, seg, src)
def _pad(x, pw):
    flat = tuple(v for pair in reversed(pw) for v in pair)
    return torch.nn.functional.pad(x, flat)

kernel_name = 'standalone__dense_activation_silu__prompt'

def setup_inputs():

    _w = (lambda a: (lambda t: t.to(torch.bfloat16) if t.is_floating_point() else t)(torch.as_tensor(a)))
    B, S, D, F = 1, 2048, 1024, 3584
    return {
        "x": _w((lambda *s: torch.randn(*s, dtype=torch.bfloat16) * 0.1)(B, S, D)),
        "w1": _w((lambda *s: torch.randn(*s, dtype=torch.bfloat16) * 3.2)(D, F) * (D ** -0.5)),
        "w2": _w((lambda *s: torch.randn(*s, dtype=torch.bfloat16) * 3.2)(F, D) * (F ** -0.5)),
    }

def reference(x, w1, w2):
    h = torch.einsum("bsd,df->bsf", x, w1)
    h = _silu(h)
    out = torch.einsum("bsf,fd->bsd", h, w2)
    return out
```

```python
import re

class I:
    __slots__ = ('t', 'kind', 'tag', 'w')
    def __init__(self, t, kind=None, tag=None, w=1):
        self.t, self.kind, self.tag, self.w = t, kind, tag, w
    def __repr__(self): return self.t

class W:
    __slots__ = ('lds', 'vm', 'w', 't')
    def __init__(self, lds=None, vm=None):
        self.lds, self.vm, self.w, self.t = lds, vm, 1, None

def lds(t, tag=None): return I(t, 'lds', tag)
def vm(t, tag=None): return I(t, 'vm', tag)
def tr(t): return I(t, w=2)

def resolve(prog):
    out = []
    n = {'lds': 0, 'vm': 0}
    last = {}
    done = {'lds': 0, 'vm': 0}
    for x in prog:
        if isinstance(x, str):
            if x.startswith('s_waitcnt'):
                m = re.search(r'vmcnt\((\d+)\)', x)
                if m: done['vm'] = max(done['vm'], n['vm'] - int(m.group(1)))
                m = re.search(r'lgkmcnt\((\d+)\)', x)
                if m: done['lds'] = max(done['lds'], n['lds'] - int(m.group(1)))
            out.append(x)
        elif isinstance(x, I):
            if x.kind:
                if x.tag is not None: last[x.tag] = (x.kind, n[x.kind])
                n[x.kind] += 1
            out.append(x.t)
        else:
            parts = []
            for kind, tags, mx, nm in (('vm', x.vm, 63, 'vmcnt'), ('lds', x.lds, 15, 'lgkmcnt')):
                if tags is None: continue
                if not isinstance(tags, (list, tuple)) or (isinstance(tags, tuple)): tags = [tags]
                idx = -1
                for tg in tags:
                    k, i = last[tg]
                    assert k == kind, (tg, k, kind)
                    idx = max(idx, i)
                cnt = n[kind] - 1 - idx
                cnt = min(cnt, mx)
                done[kind] = max(done[kind], n[kind] - cnt)
                parts.append('%s(%d)' % (nm, cnt))
            x.t = 's_waitcnt ' + ' '.join(parts)
            out.append(x.t)
    return out

class Sched:
    def __init__(self):
        self.mf = []; self.post = []; self.pre = []
    def add(self, mfma):
        self.mf.append(mfma); self.post.append([]); self.pre.append([]); return len(self.mf) - 1
    def load(self, g):
        l = sum(x.w if not isinstance(x, str) else 1 for x in self.post[g])
        if g + 1 < len(self.mf): l += sum(x.w if not isinstance(x, str) else 1 for x in self.pre[g+1])
        return l
    def pour(self, items, start, end, cap=2, even=True):
        groups = [it if isinstance(it, list) else [it] for it in items]
        wts = [sum(x.w if not isinstance(x, str) else 1 for x in g) for g in groups]
        tot = sum(wts); pos = []
        g = start; acc = 0
        for grp, w in zip(groups, wts):
            if even:
                ideal = start + int((acc / max(1, tot)) * (end - start))
                g = max(g, ideal)
            while g < end - 1 and self.load(g) + w > cap and self.load(g) > 0: g += 1
            g = min(g, end - 1)
            self.post[g].extend(grp); pos.append(g); acc += w
        return pos
    def emit(self):
        out = []
        for i, m in enumerate(self.mf):
            out += self.pre[i]; out.append(m); out += self.post[i]
        return out

_reg = re.compile(r'\b([vas])\[(\d+):(\d+)\]|\b([vas])(\d+)\b')
def regs(op):
    r = set()
    for m in _reg.finditer(op):
        if m.group(1): r |= {(m.group(1), i) for i in range(int(m.group(2)), int(m.group(3)) + 1)}
        else: r.add((m.group(4), int(m.group(5))))
    return r
TRANS = ('v_exp_f32', 'v_rcp_f32', 'v_log_f32', 'v_rsq_f32', 'v_sqrt_f32')
def parse(line):
    line = line.split(';')[0].strip()
    if not line or line.endswith(':') or line.startswith('.'): return None
    p = line.split(None, 1)
    op = p[0]; ops = [o.strip() for o in p[1].split(',')] if len(p) > 1 else []
    return op, ops
def check_hazards(lines):
    ins = []
    for ln in lines:
        p = parse(ln)
        if p: ins.append((p[0], p[1], ln))
    msgs = []
    def states(i, j):
        s = 0
        for k in range(i + 1, j):
            op, ops, _ = ins[k]
            s += int(ops[0]) + 1 if op == 's_nop' else 1
        return s
    def isvalu(op): return op.startswith('v_') and not op.startswith('v_mfma')
    def wr(op, ops):
        if op.startswith('v_cmp'): return regs(ops[0]) | ({('vcc', 0)} if ops[0] == 'vcc' else set())
        if op.startswith('v_permlane'): return regs(ops[0]) | regs(ops[1])
        if op.startswith('v_') : return regs(ops[0]) | ({('vcc', 0)} if len(ops) > 1 and ops[1] == 'vcc' and '_co_' in op else set())
        if op.startswith('ds_read') or (op.startswith(('buffer_load', 'global_load')) and ' lds' not in ' '.join(ops) + ' '): return regs(ops[0])
        if op.startswith('s_') and not op.startswith(('s_cmp', 's_waitcnt', 's_cbranch', 's_branch', 's_barrier', 's_nop', 's_endpgm', 's_setprio', 's_sleep')): return regs(ops[0]) | ({('m0', 0)} if ops and ops[0] == 'm0' else set())
        return set()
    def rd(op, ops):
        if op.startswith(('buffer_store', 'global_store', 'ds_write', 'buffer_atomic', 's_cmp')): return set().union(*[regs(o) for o in ops]) if ops else set()
        if op.startswith('buffer_load') and ' lds' in ' '.join(ops) + ' ': return set().union(*[regs(o) for o in ops]) | {('m0', 0)}
        if op.startswith('v_permlane'): return regs(ops[0]) | regs(ops[1])
        r = set().union(*[regs(o) for o in ops[1:]]) if len(ops) > 1 else set()
        if op.startswith('v_cndmask') and ops[-1] == 'vcc': r.add(('vcc', 0))
        if op.startswith(('v_fmac',)): r |= regs(ops[0])
        return r
    for j, (op, ops, ln) in enumerate(ins):
        R, Wr = rd(op, ops), wr(op, ops)
        for i in range(j - 1, max(-1, j - 22), -1):
            pop, pops, pln = ins[i]
            PW = wr(pop, pops); need = 0
            if pop.startswith('v_mfma'):
                passes = 8 if '32x32' in pop else 4
                D = regs(pops[0]); C = regs(pops[3])
                if op.startswith('v_mfma'):
                    if D & (regs(ops[1]) | regs(ops[2])): need = passes + 4
                    elif D & regs(ops[3]) and regs(ops[3]) != D: need = passes + 2
                elif D & (R | Wr): need = passes + 4
                if isvalu(op) and C & Wr: need = max(need, passes - 1)
            elif isvalu(pop):
                vw = {r for r in PW if r[0] in 'va'}; sw = {r for r in PW if r[0] in ('s', 'vcc')}
                if op.startswith('v_mfma') and vw & R: need = 2
                if pop in TRANS and isvalu(op) and op not in TRANS and vw & R: need = max(need, 1)
                if op.startswith(('v_readlane', 'v_readfirstlane')) and vw & R: need = max(need, 1)
                if op.startswith('v_permlane') and vw & R: need = max(need, 2)
                if sw & R:
                    if op.startswith(('buffer_', 'global_')): need = max(need, 5)
                    elif op.startswith(('v_readlane', 'v_writelane')): need = max(need, 4)
                    elif isvalu(op): need = max(need, 2)
            elif pop.startswith(('buffer_store_dwordx4', 'buffer_store_dwordx3', 'global_store_dwordx4')):
                if regs(pops[0] if pop.startswith('buffer') else pops[1]) & Wr: need = 2
            elif pop.startswith('s_') and ('m0', 0) in PW and ('m0', 0) in R: need = 1
            if need and states(i, j) < need:
                msgs.append('need %d states have %d: [%s] -> [%s]' % (need, states(i, j), pln.strip(), ln.strip()))
    return msgs
```

```python
import sys
from asmlib import *

HDR = open('standalone__dense_activation_silu__prompt.s.ref').read().split('; Override launch')[0]
MF = 'v_mfma_f32_16x16x32_bf16'
LOG2E = 0x3fb8aa3b
H_BYTES = 2048 * 3584 * 2
STAMP_OFF = 0xF000000

def kd(name, vgpr=512, acc=256):
    return ['.amdhsa_kernel %s' % name, '  .amdhsa_next_free_vgpr %d' % vgpr, '  .amdhsa_next_free_sgpr 96', '  .amdhsa_accum_offset %d' % acc,
            '  .amdhsa_group_segment_fixed_size 0', '  .amdhsa_kernarg_size 48', '  .amdhsa_user_sgpr_count 2',
            '  .amdhsa_user_sgpr_kernarg_segment_ptr 1', '  .amdhsa_system_sgpr_workgroup_id_x 1',
            '  .amdhsa_float_denorm_mode_32 3', '.end_amdhsa_kernel']

def srd(d, ptr, nbytes, add=None):
    o = []
    if add is None:
        o += ['s_mov_b32 s%d, s%d' % (d, ptr), 's_and_b32 s%d, s%d, 0xffff' % (d+1, ptr+1), 's_mov_b32 s%d, %d' % (d+2, nbytes)]
    else:
        o += ['s_add_u32 s%d, s%d, s%d' % (d, ptr, add), 's_addc_u32 s%d, s%d, 0' % (d+1, ptr+1), 's_and_b32 s%d, s%d, 0xffff' % (d+1, d+1),
              's_sub_u32 s%d, %d, s%d' % (d+2, nbytes, add)]
    o.append('s_mov_b32 s%d, 0x20000' % (d+3))
    return o

def stamp(k, on):
    if not on: return []
    return ['s_memrealtime s[90:91]', 's_memtime s[92:93]', 's_waitcnt lgkmcnt(0)', 's_mov_b32 s%d, s90' % (64+2*k), 's_mov_b32 s%d, s92' % (65+2*k)]

def stamp_store(n, kidx, lbl):
    o = ['s_waitcnt vmcnt(0)']
    o += srd(16, 14, 0x10000000)
    o += ['s_lshl_b32 s46, s2, 2', 's_add_u32 s46, s46, s36', 's_lshl_b32 s46, s46, 7', 's_add_u32 s46, s46, %d' % (STAMP_OFF + kidx*0x100000), 'v_mov_b32 v1, 0']
    o += ['s_mov_b64 exec, 1']
    for k in range(2*n):
        o += ['v_mov_b32 v2, s%d' % (64+k), 'buffer_store_dword v2, v1, s[16:19], s46 offen offset:%d' % (4*k)]
    o += ['s_waitcnt vmcnt(0)']
    return o

def ids():
    return ['v_lshrrev_b32 v1, 6, v0', 's_and_b32 s46, s2, 7', 'v_readfirstlane_b32 s36, v1', 's_lshr_b32 s47, s2, 3',
            's_lshr_b32 s37, s46, 1', 's_lshl_b32 s37, s37, 2', 's_lshr_b32 s48, s47, 3', 's_add_u32 s37, s37, s48',
            's_and_b32 s38, s46, 1', 's_lshl_b32 s38, s38, 3', 's_and_b32 s49, s47, 7', 's_add_u32 s38, s38, s49',
            'v_and_b32 v0, 63, v0']

def code_prefetch(name, nblk):
    o = ['s_getpc_b64 s[46:47]', name + '_pf:', 'v_lshlrev_b32 v1, 7, v0', 's_lshl_b32 s48, s36, 13', 'v_add_u32 v1, s48, v1', 's_mov_b32 s48, %s_end-%s_pf' % (name, name)]
    for i in range(nblk):
        if i: o.append('v_add_u32 v1, 32768, v1')
        o += ['v_min_u32 v9, s48, v1', vm('global_load_dword v2, v9, s[46:47]')]
    return o

def silu_chunk(acc_tile, c_t0, outbuf, tmp, store):
    it = []
    for j in range(2):
        ob = outbuf(j)
        for tt in range(2):
            a = acc_tile(c_t0 + tt, j)
            T = tmp
            for i in range(4): it.append('v_mul_f32 v%d, s56, v%d' % (T+i, a+i))
            for i in range(4): it.append(tr('v_exp_f32 v%d, v%d' % (T+i, T+i)))
            for i in range(4): it.append('v_add_f32 v%d, 1.0, v%d' % (T+i, T+i))
            for i in range(4): it.append(tr('v_rcp_f32 v%d, v%d' % (T+i, T+i)))
            for i in range(4): it.append('v_mul_f32 v%d, v%d, v%d' % (T+i, T+i, a+i))
            it.append('v_cvt_pk_bf16_f32 v%d, v%d, v%d' % (ob+2*tt, T, T+1))
            it.append('v_cvt_pk_bf16_f32 v%d, v%d, v%d' % (ob+2*tt+1, T+2, T+3))
        it.append(store(j, ob))
    return it

def gen_k1(o):
    name = 'g1_kernel'
    P = []
    e = P.append
    ST = o.get('stamps')
    ACC, AF, TA1, TA2, XV, WV, XR, HV, TMP, OB = 16, 128, 160, 176, 188, 192, 196, 198, 200, 208
    NSLOT = 5
    XBASE = 81920
    e('.p2align 8'); e('.type %s,@function' % name); e(name + ':')
    e('s_cmp_ge_u32 s2, 256'); e('s_cbranch_scc1 %s_end' % name)
    e('s_load_dwordx4 s[4:7], s[0:1], 0'); e('s_load_dwordx4 s[12:15], s[0:1], 32')
    P += stamp(0, ST)
    P += ids()
    e('s_lshl_b32 s39, s49, 1'); e('s_lshl_b32 s48, s48, 2'); e('s_add_u32 s39, s39, s48'); e('s_lshr_b32 s48, s46, 1'); e('s_add_u32 s39, s39, s48'); e('s_and_b32 s39, s39, 15')
    if o.get('norot'): e('s_mov_b32 s39, 0')
    e('s_and_b32 s50, s38, 1'); e('s_mul_i32 s51, s38, 448'); e('s_lshl_b32 s52, s50, 6'); e('s_sub_u32 s51, s51, s52')
    e('s_lshl_b32 s52, s50, 8'); e('s_add_u32 s54, s51, s52'); e('s_sub_u32 s55, s51, s52'); e('s_add_u32 s55, s55, 256')
    e('v_lshrrev_b32 v3, 3, v0'); e('v_and_b32 v4, 7, v0')
    e('s_lshl_b32 s46, s37, 2'); e('s_add_u32 s46, s46, s36'); e('s_lshl_b32 s47, s46, 16')
    e('v_lshrrev_b32 v5, 1, v3')
    for p in range(4):
        e('v_xor_b32 v6, v4, v5') if p % 2 == 0 else (e('v_or_b32 v7, 4, v5'), e('v_xor_b32 v6, v4, v7'))
        e('v_lshlrev_b32 v6, 4, v6'); e('v_lshl_add_u32 v6, v3, 11, v6')
        e('s_add_u32 s48, s47, %d' % (8*p*2048 - 1024*p)); e('v_add_u32 v%d, s48, v6' % (XV+p))
    e('v_lshrrev_b32 v3, 4, v0'); e('v_bfe_u32 v4, v0, 1, 3'); e('v_and_b32 v5, 1, v0'); e('v_lshlrev_b32 v5, 4, v5')
    e('s_mul_i32 s47, s36, %d' % (16*7168)); e('s_movk_i32 s48, 7168'); e('v_mul_lo_u32 v8, v3, s48'); e('v_add_u32 v8, v8, v5')
    for p in range(4):
        e('v_xor_b32 v6, v4, v3') if p < 2 else (e('v_or_b32 v7, 4, v3'), e('v_xor_b32 v6, v4, v7'))
        e('v_lshl_add_u32 v6, v6, 5, v8')
        e('s_add_u32 s48, s47, %d' % (4*p*7168 - 1024*p)); e('v_add_u32 v%d, s48, v6' % (WV+p))
    e('s_lshl_b32 s44, s36, 12')
    e('s_mul_i32 s45, s36, 20480'); e('s_add_u32 s45, s45, %d' % XBASE)
    e('s_lshl_b32 s40, s39, 7')
    e('s_waitcnt lgkmcnt(0)')
    P += srd(16, 4, 2048*1024*2); P += srd(20, 6, 1024*3584*2, 54); P += srd(24, 6, 1024*3584*2, 55)
    def loads(sg):
        slot = sg % NSLOT; g = []
        g.append('s_mul_i32 s41, s40, 3584')
        g.append('s_add_u32 m0, s44, %d' % (slot*16384))
        wsrd = 20 if sg < 16 else 24
        first = 's_nop 0' if sg < 4 else None
        if first: g.append(first)
        for p in range(4): g.append(vm('buffer_load_dwordx4 v%d, s[%d:%d], s41 offen offset:%d lds' % (WV+p, wsrd, wsrd+3, 1024*p), ('w', sg)))
        if sg < 16:
            g.append('s_add_u32 m0, s45, %d' % (slot*4096))
            if first: g.append(first)
            for p in range(4): g.append(vm('buffer_load_dwordx4 v%d, s[16:19], s40 offen offset:%d lds' % (XV+p, 1024*p), ('w', sg)))
        g.append('s_add_u32 s40, s40, 128'); g.append('s_and_b32 s40, s40, 2047')
        return g
    for sg in range(4): P += loads(sg)
    if o.get('cpf', 1): P += code_prefetch(name, 1)
    P += srd(32, 14, H_BYTES)
    e('v_lshrrev_b32 v3, 4, v0'); e('v_bfe_u32 v4, v0, 2, 2'); e('v_and_b32 v5, 3, v0')
    e('v_lshl_add_u32 v6, v3, 3, v4'); e('v_lshlrev_b32 v6, 8, v6'); e('v_lshl_add_u32 v6, v5, 3, v6')
    e('v_and_b32 v7, 1, v3'); e('v_lshl_add_u32 v7, v7, 2, v4')
    for t in range(8):
        e('v_xor_b32 v8, %d, v7' % t); e('v_lshl_add_u32 v%d, v8, 5, v6' % (TA1+t)); e('v_add_u32 v%d, 0x10000, v%d' % (TA1+8+t, TA1+t))
    e('s_lshl_b32 s46, s50, 1')
    for t in range(6):
        e('s_add_u32 s47, s46, %d' % t); e('v_xor_b32 v8, s47, v7'); e('v_lshl_add_u32 v%d, v8, 5, v6' % (TA2+t)); e('v_add_u32 v%d, 0x10000, v%d' % (TA2+6+t, TA2+t))
    e('v_and_b32 v4, 15, v0'); e('v_lshrrev_b32 v5, 1, v4'); e('v_xor_b32 v5, v5, v3')
    e('v_lshlrev_b32 v4, 7, v4'); e('v_add_u32 v4, s45, v4')
    e('v_lshl_add_u32 v%d, v5, 4, v4' % XR); e('v_xor_b32 v5, 4, v5'); e('v_lshl_add_u32 v%d, v5, 4, v4' % (XR+1))
    e('s_lshl_b32 s46, s37, 2'); e('s_add_u32 s46, s46, s36'); e('s_mul_i32 s46, s46, %d' % (112*2048)); e('v_lshlrev_b32 v4, 4, v0'); e('v_add_u32 v%d, s46, v4' % HV)
    e('s_mul_i32 s46, s38, 7'); e('s_mul_i32 s47, s50, 3'); e('s_add_u32 s47, s47, s46'); e('s_lshl_b32 s58, s47, 11'); e('s_add_u32 s59, s58, 4096')
    e('s_lshl_b32 s47, s50, 2'); e('s_sub_u32 s47, s46, s47'); e('s_add_u32 s47, s47, 4'); e('s_lshl_b32 s60, s47, 11'); e('s_add_u32 s61, s60, 4096')
    e('s_mov_b32 s56, 0x%x' % (LOG2E | 0x80000000))
    ops = []
    for ps, nt in ((0, 8), (1, 6)):
        for u in range(32):
            for t in range(nt): ops.append((ps*16 + u//2, u % 2, t, ps, u))
    R = 8
    def rd(n):
        sg, st, t, ps, u = ops[n]
        slot = sg % NSLOT; off = slot*16384 + st*8192
        base = (TA1, TA2)[ps]; nt = (8, 6)[ps]
        areg = base + t
        if off >= 65536: areg += nt; off -= 65536
        f = AF + (n % R)*4
        return [lds('ds_read_b64_tr_b16 v[%d:%d], v%d offset:%d' % (f, f+1, areg, off), ('a', n, 0)),
                lds('ds_read_b64_tr_b16 v[%d:%d], v%d offset:%d' % (f+2, f+3, areg, off+1024), ('a', n, 1))]
    def xrd(sg):
        r = []
        for st in range(2):
            for j in range(2):
                a = ((sg*2+st)*2+j)*4
                r.append(lds('ds_read_b128 a[%d:%d], v%d offset:%d' % (a, a+3, XR+st, (sg % NSLOT)*4096 + 2048*j), ('x', sg*2+st, j)))
        return r
    def acc(t, j): return ACC + (t*2+j)*4
    P.append(W(vm=('w', 0))); e('s_barrier')
    P += stamp(1, ST)
    P += xrd(0)
    for n in range(R): P += rd(n)
    S = Sched()
    first_m = {}
    for n, (sg, st, t, ps, u) in enumerate(ops):
        f = AF + (n % R)*4
        for j in range(2):
            a = acc(ps*8 + t, j); b = (u*2+j)*4
            c = '0' if u == 0 else 'v[%d:%d]' % (a, a+3)
            i = S.add('%s v[%d:%d], v[%d:%d], a[%d:%d], %s' % (MF, a, a+3, f, f+3, b, b+3, c))
            if j == 0: first_m[n] = i
    N = len(ops)
    bar_gap = {}
    for n in range(N):
        if n % 2 == 0:
            tags = [('a', n+1, 1)]
            sg, st, t, ps, u = ops[n]
            if ps == 0 and t == 0: tags += [('x', u, 0), ('x', u, 1)]
            S.pre[first_m[n]].append(W(lds=tags))
        m = n + R
        if m < N:
            g = first_m[n] + 1
            if ops[m][0] != ops[m-1][0]:
                S.post[g] += [W(vm=('w', ops[m][0])), 's_barrier']; bar_gap[ops[m][0]] = g
            r = rd(m)
            S.post[g].append(r[0])
            if g + 1 < len(S.mf): S.post[g+1].append(r[1])
    for sg in range(1, 32):
        g0 = bar_gap[sg]; g1 = bar_gap.get(sg+1, len(S.mf))
        if sg < 16: S.pour(xrd(sg), g0+1, g0+12, cap=2, even=False)
        if sg + 3 < 32:
            L = loads(sg+3)
            S.pour(L, g0+1, g1, cap=2, even=True)
    def mkstore(sreg, c):
        return lambda j, ob: vm('buffer_store_dwordx4 v[%d:%d], v%d, s[32:35], s%d offen offset:%d %s' % (ob, ob+3, HV, sreg + c//2, (c % 2)*2048 + j*1024, o.get('h_aux', '')), ('h', sreg, c, j))
    epi1 = []
    for c in range(4): epi1 += silu_chunk(acc, 2*c, lambda j, c=c: OB + ((c % 2)*2+j)*4, TMP + (c % 2)*4, mkstore(58, c))
    p2start = first_m[256]
    S.pour(epi1, p2start + 1, p2start + int(o.get('epi_span', 0.75)*384), cap=o.get('epi_cap', 3), even=True)
    body = S.emit()
    if ST:
        k = body.index(S.mf[p2start]); body = body[:k] + stamp(2, ST) + body[k:]
    P += body
    P += stamp(3, ST)
    e('s_nop 7')
    for c in range(3): P += silu_chunk(acc, 8+2*c, lambda j, c=c: OB + ((c % 2)*2+j)*4, TMP + (c % 2)*4, mkstore(60, c))
    P += stamp(4, ST)
    if ST:
        e('s_waitcnt vmcnt(0)'); P += stamp(5, ST); P += stamp_store(6, 0, name)
    e(name + '_end:'); e('s_endpgm')
    return fix_m0(resolve(P)), kd(name)

def fix_m0(lines):
    out = []
    for ln in lines:
        if out and ' lds' in ln and ln.startswith('buffer_load') and ' m0,' in out[-1]: out.append('s_nop 0')
        out.append(ln)
    return out

def gen_k2(o):
    name = 'g2_kernel'
    P = []
    e = P.append
    ST = o.get('stamps')
    ACC, AF, TA, WV, HV, TAB, OV, OB = 16, 64, 96, 100, 102, 103, 104, 108
    e('.p2align 8'); e('.type %s,@function' % name); e(name + ':')
    e('s_cmp_ge_u32 s2, 256'); e('s_cbranch_scc1 %s_end' % name)
    e('s_load_dwordx4 s[8:11], s[0:1], 16'); e('s_load_dwordx4 s[12:15], s[0:1], 32')
    P += stamp(0, ST)
    P += ids()
    e('s_lshl_b32 s39, s48, 1'); e('s_add_u32 s39, s39, s49'); e('s_and_b32 s39, s39, 7')
    if o.get('norot2'): e('s_mov_b32 s39, 0')
    e('s_lshl_b32 s46, s39, 2'); e('v_add_u32 v3, s46, v0'); e('v_and_b32 v3, 31, v3')
    e('v_lshrrev_b32 v4, 2, v3'); e('v_mul_u32_u24 v4, 7, v4'); e('v_and_b32 v5, 3, v3'); e('v_add_u32 v4, v4, v5'); e('v_bfe_u32 v5, v3, 1, 1'); e('v_mul_u32_u24 v5, 3, v5'); e('v_add_u32 v4, v4, v5')
    e('s_mul_i32 s46, s39, 3'); e('s_sub_u32 s46, s46, 32'); e('v_add_u32 v3, s46, v0')
    e('v_subrev_u32 v5, 24, v3'); e('v_cmp_le_i32 vcc, 24, v3'); e('s_nop 1'); e('v_cndmask_b32 v3, v3, v5, vcc')
    e('v_mul_u32_u24 v5, 171, v3'); e('v_lshrrev_b32 v5, 9, v5')
    e('v_lshlrev_b32 v6, 2, v5'); e('v_add_u32 v6, v6, v3'); e('v_add_u32 v6, 2, v6')
    e('v_cmp_gt_u32 vcc, 32, v0'); e('s_nop 1'); e('v_cndmask_b32 v4, v6, v4, vcc')
    e('v_lshlrev_b32 v4, 12, v4'); e('v_mov_b32 v5, 0x7000000'); e('v_cmp_gt_u32 vcc, 56, v0'); e('s_nop 1'); e('v_cndmask_b32 v%d, v5, v4, vcc' % TAB)
    e('v_lshrrev_b32 v3, 3, v0'); e('v_bfe_u32 v4, v0, 1, 2'); e('v_lshrrev_b32 v5, 1, v3'); e('v_xor_b32 v4, v4, v5')
    e('v_and_b32 v5, 1, v0'); e('v_lshlrev_b32 v5, 4, v5'); e('v_lshl_add_u32 v4, v4, 5, v5'); e('v_lshl_add_u32 v4, v3, 11, v4')
    e('s_lshl_b32 s46, s36, 15'); e('s_lshl_b32 s47, s38, 7'); e('s_add_u32 s46, s46, s47')
    e('v_add_u32 v%d, s46, v4' % WV); e('v_add_u32 v%d, %d, v%d' % (WV+1, 8*2048 - 1024, WV))
    e('s_lshl_b32 s46, s37, 2'); e('s_add_u32 s46, s46, s36'); e('s_mul_i32 s46, s46, %d' % (112*2048)); e('v_lshlrev_b32 v4, 4, v0'); e('v_add_u32 v%d, s46, v4' % HV)
    e('s_lshl_b32 s44, s36, 11')
    e('s_mov_b32 s42, 0')
    e('s_waitcnt lgkmcnt(0)')
    P += srd(24, 8, 3584*1024*2); P += srd(32, 14, H_BYTES)
    def tabread():
        return ['v_readlane_b32 s40, v%d, s42' % TAB, 's_add_u32 s42, s42, 1']
    def loads(sg, pro=False):
        slot = sg % 8; g = []
        g.append('s_lshl_b32 s41, s40, 5')
        g.append('s_add_u32 m0, s44, %d' % (slot*8192))
        if pro: g.append('s_nop 2')
        for p in range(2): g.append(vm('buffer_load_dwordx4 v%d, s[24:27], s41 offen offset:%d lds' % (WV+p, 1024*p), ('w', sg)))
        for i in range(4):
            a = (slot*4 + i)*4
            g.append(vm('buffer_load_dwordx4 a[%d:%d], v%d, s[32:35], s40 offen offset:%d %s' % (a, a+3, HV, 1024*i, o.get('hl_aux', '')), ('w', sg)))
        g += tabread()
        return g
    P += tabread()
    for sg in range(7): P += loads(sg, True)
    if o.get('cpf', 1): P += code_prefetch(name, 1)
    P += srd(28, 10, 2048*1024*2)
    e('v_lshrrev_b32 v3, 4, v0'); e('v_bfe_u32 v4, v0, 2, 2'); e('v_and_b32 v5, 3, v0')
    e('v_lshl_add_u32 v6, v3, 2, v4'); e('v_bfe_u32 v7, v6, 1, 2'); e('v_lshlrev_b32 v6, 7, v6'); e('v_lshl_add_u32 v6, v5, 3, v6')
    for t in range(4):
        e('v_xor_b32 v8, %d, v7' % t); e('v_lshl_add_u32 v%d, v8, 5, v6' % (TA+t))
    e('v_and_b32 v4, 15, v0'); e('v_lshlrev_b32 v4, 11, v4'); e('v_and_b32 v5, 1, v3'); e('v_lshl_add_u32 v4, v5, 5, v4'); e('v_lshrrev_b32 v5, 1, v3'); e('v_lshl_add_u32 v4, v5, 4, v4')
    e('s_lshl_b32 s46, s37, 2'); e('s_add_u32 s46, s46, s36'); e('s_lshl_b32 s46, s46, 16'); e('s_lshl_b32 s47, s38, 7'); e('s_add_u32 s46, s46, s47'); e('v_add_u32 v%d, s46, v4' % OV)
    e('s_mov_b32 s57, 32768')
    for i in range(32): e('v_mov_b32 v%d, 0' % (ACC+i))
    NIT = 7
    ops = [(sg, st, t) for sg in range(8*NIT + 1) for st in range(2) for t in range(4)]
    R = 8
    def rd(n):
        sg, st, t = ops[n]
        off = (sg % 8)*8192 + st*4096; f = AF + (n % R)*4
        return [lds('ds_read_b64_tr_b16 v[%d:%d], v%d offset:%d' % (f, f+1, TA+t, off), ('a', n, 0)),
                lds('ds_read_b64_tr_b16 v[%d:%d], v%d offset:%d' % (f+2, f+3, TA+t, off+2048), ('a', n, 1))]
    def acc(t, j): return ACC + (t*2+j)*4
    P.append(W(vm=('w', 0))); e('s_barrier')
    P += stamp(1, ST)
    for n in range(R): P += rd(n)[:(1 if n == R-1 else 2)]
    e('s_mov_b32 s43, %d' % NIT)
    its = []
    for it in range(NIT):
        S = Sched(); fm = {}
        for n in range(64*it, 64*it+64):
            sg, st, t = ops[n]; f = AF + (n % R)*4
            for j in range(2):
                a = acc(t, j); b = (((sg % 8)*2 + st)*2 + j)*4
                i = S.add('%s v[%d:%d], v[%d:%d], a[%d:%d], v[%d:%d]' % (MF, a, a+3, f, f+3, b, b+3, a, a+3))
                if j == 0: fm[n] = i
        bar = {}
        S.post[0].append(rd(64*it + R - 1)[1])
        for n in range(64*it, 64*it+64):
            if n % 2 == 0: S.pre[fm[n]].append(W(lds=[('a', n+1, 1)]))
            m = n + R; g = fm[n] + 1
            if ops[m][0] != ops[m-1][0]:
                S.post[g] += [W(vm=('w', ops[m][0])), 's_barrier']; bar[ops[m][0]] = g
            r = rd(m); S.post[g].append(r[0])
            if g + 1 < len(S.mf): S.post[g+1].append(r[1])
        for sg in sorted(bar):
            S.pour(loads(sg+6), bar[sg]+1, bar.get(sg+1, len(S.mf)), cap=3, even=True)
        its.append(['IT%d' % it] + S.emit())
    for b in its: P += b
    e('ITEND')
    P += stamp(2, ST)
    e('s_nop 7')
    k = 0
    for j in range(2):
        for u in range(2):
            ob = OB + (k % 2)*4; k += 1
            for tt in range(2):
                a = acc(2*u+tt, j)
                e('v_cvt_pk_bf16_f32 v%d, v%d, v%d' % (ob+2*tt, a, a+1)); e('v_cvt_pk_bf16_f32 v%d, v%d, v%d' % (ob+2*tt+1, a+2, a+3))
            e('s_nop 1')
            e('v_permlane16_swap_b32 v%d, v%d' % (ob, ob+2)); e('v_permlane16_swap_b32 v%d, v%d' % (ob+1, ob+3))
            P.append(vm('buffer_store_dwordx4 v[%d:%d], v%d, s[28:31], %s offen offset:%d' % (ob, ob+3, OV, 's57' if j else '0', 64*u)))
    if ST:
        P += stamp(3, ST); e('s_waitcnt vmcnt(0)'); P += stamp(4, ST); P += stamp_store(5, 1, name)
    e(name + '_end:'); e('s_endpgm')
    L = fix_m0(resolve(P))
    idx = [L.index('IT%d' % i) for i in range(NIT)] + [L.index('ITEND')]
    bodies = [L[idx[i]+1:idx[i+1]] for i in range(NIT)]
    ref = bodies[1]
    for i in range(1, NIT): assert bodies[i] == ref, ('iteration differs', i, [(a, b) for a, b in zip(bodies[i], ref) if a != b][:5])
    d0 = [(a, b) for a, b in zip(bodies[0], ref) if a != b]
    for a, b in d0:
        assert a.startswith('s_waitcnt') and b.startswith('s_waitcnt'), (a, b)
        na = int(re.search(r'\((\d+)\)', a).group(1)); nb = int(re.search(r'\((\d+)\)', b).group(1))
        assert nb <= na, (a, b)
    out = L[:idx[0]] + ['.p2align 6', name + '_loop:'] + ref + ['s_sub_u32 s43, s43, 1', 's_cmp_lg_u32 s43, 0', 's_cbranch_scc1 %s_loop' % name] + L[idx[-1]+1:]
    return out, kd(name, 256 + 128, 256), L

def build(o):
    k1, d1 = gen_k1(o)
    k2, d2, lin2 = gen_k2(o)
    for nm, l in (('k1', k1), ('k2', lin2)):
        for m in check_hazards(l): print('HAZARD', nm, m, file=sys.stderr)
    s = HDR + '; @launch kernel=g1_kernel grid=(256,1,1) block=(256,1,1) lds=163840\n; @launch kernel=g2_kernel grid=(256,1,1) block=(256,1,1) lds=163840\n'
    s += '.amdgcn_target "amdgcn-amd-amdhsa--gfx950"\n.text\n'
    s += '\n'.join(k1 + k2) + '\n.fill 64, 4, 0xbf800000\n.section .rodata,"a"\n.p2align 6\n' + '\n'.join(d1) + '\n.p2align 6\n' + '\n'.join(d2) + '\n'
    return s

if __name__ == '__main__':
    o = {}
    for a in sys.argv[2:]:
        k, v = a.split('=')
        try: v = float(v) if '.' in v else int(v)
        except ValueError: pass
        o[k] = v
    open(sys.argv[1], 'w').write(build(o))
```

```python
import re

class I:
    __slots__ = ('t', 'kind', 'tag', 'w')
    def __init__(self, t, kind=None, tag=None, w=1):
        self.t, self.kind, self.tag, self.w = t, kind, tag, w
    def __repr__(self): return self.t

class W:
    __slots__ = ('lds', 'vm', 'w', 't')
    def __init__(self, lds=None, vm=None):
        self.lds, self.vm, self.w, self.t = lds, vm, 1, None

def lds(t, tag=None): return I(t, 'lds', tag)
def vm(t, tag=None): return I(t, 'vm', tag)
def tr(t): return I(t, w=2)

def resolve(prog):
    out = []
    n = {'lds': 0, 'vm': 0}
    last = {}
    done = {'lds': 0, 'vm': 0}
    for x in prog:
        if isinstance(x, str):
            if x.startswith('s_waitcnt'):
                m = re.search(r'vmcnt\((\d+)\)', x)
                if m: done['vm'] = max(done['vm'], n['vm'] - int(m.group(1)))
                m = re.search(r'lgkmcnt\((\d+)\)', x)
                if m: done['lds'] = max(done['lds'], n['lds'] - int(m.group(1)))
            out.append(x)
        elif isinstance(x, I):
            if x.kind:
                if x.tag is not None: last[x.tag] = (x.kind, n[x.kind])
                n[x.kind] += 1
            out.append(x.t)
        else:
            parts = []
            for kind, tags, mx, nm in (('vm', x.vm, 63, 'vmcnt'), ('lds', x.lds, 15, 'lgkmcnt')):
                if tags is None: continue
                if not isinstance(tags, (list, tuple)) or (isinstance(tags, tuple)): tags = [tags]
                idx = -1
                for tg in tags:
                    k, i = last[tg]
                    assert k == kind, (tg, k, kind)
                    idx = max(idx, i)
                cnt = n[kind] - 1 - idx
                cnt = min(cnt, mx)
                done[kind] = max(done[kind], n[kind] - cnt)
                parts.append('%s(%d)' % (nm, cnt))
            x.t = 's_waitcnt ' + ' '.join(parts)
            out.append(x.t)
    return out

class Sched:
    def __init__(self):
        self.mf = []; self.post = []; self.pre = []
    def add(self, mfma):
        self.mf.append(mfma); self.post.append([]); self.pre.append([]); return len(self.mf) - 1
    def load(self, g):
        l = sum(x.w if not isinstance(x, str) else 1 for x in self.post[g])
        if g + 1 < len(self.mf): l += sum(x.w if not isinstance(x, str) else 1 for x in self.pre[g+1])
        return l
    def pour(self, items, start, end, cap=2, even=True):
        groups = [it if isinstance(it, list) else [it] for it in items]
        wts = [sum(x.w if not isinstance(x, str) else 1 for x in g) for g in groups]
        tot = sum(wts); pos = []
        g = start; acc = 0
        for grp, w in zip(groups, wts):
            if even:
                ideal = start + int((acc / max(1, tot)) * (end - start))
                g = max(g, ideal)
            while g < end - 1 and self.load(g) + w > cap and self.load(g) > 0: g += 1
            g = min(g, end - 1)
            self.post[g].extend(grp); pos.append(g); acc += w
        return pos
    def emit(self):
        out = []
        for i, m in enumerate(self.mf):
            out += self.pre[i]; out.append(m); out += self.post[i]
        return out

def wt(x):
    if isinstance(x, list): return sum(wt(y) for y in x)
    if isinstance(x, W): return 1
    t = x.t if isinstance(x, I) else x
    if t.endswith(':'): return 0
    if t.startswith('buffer_store_dwordx4'): return 3
    if t.startswith('buffer_'): return 2
    if t.startswith('ds_read_b128'): return 2
    if t.startswith(('v_exp', 'v_rcp')): return 2
    return 1

def txt(x): return x.t if isinstance(x, (I, W)) else x
def isvalu(x):
    if isinstance(x, list): return any(isvalu(y) for y in x)
    return not isinstance(x, W) and txt(x).startswith('v_')
def ismem(x):
    if isinstance(x, list): return any(ismem(y) for y in x)
    return not isinstance(x, W) and txt(x).startswith(('ds_', 'buffer_', 'global_'))

class Sched2:
    def __init__(self):
        self.mf = []; self.front = []; self.back = []; self.items = []; self.cap = []
    def add(self, m):
        self.mf.append(m); self.front.append([]); self.back.append([]); self.cap.append(2); return len(self.mf) - 1
    def item(self, chain, ins, rel, dl, tgt=None, prio=0, sep=0, hard=None):
        it = dict(chain=chain, ins=ins, rel=rel, dl=dl, tgt=rel if tgt is None else tgt, prio=prio, w=wt(ins), gap=None, sep=sep, hard=dl if hard is None else hard)
        self.items.append(it); return it
    def run(self):
        n = len(self.mf)
        chains = {}
        for it in self.items: chains.setdefault(it['chain'], []).append(it)
        for c in chains.values():
            for k in range(len(c) - 2, -1, -1): c[k]['dl'] = min(c[k]['dl'], c[k+1]['dl'])
        head = {c: 0 for c in chains}
        self.mid = [[] for _ in range(n)]
        lastv = -99
        for g in range(n):
            used = wt(self.front[g]) + wt(self.back[g])
            vch = set(); first = []; second = []
            while True:
                cand = []
                for c, L in chains.items():
                    if head[c] < len(L):
                        it = L[head[c]]
                        if it['rel'] <= g and not (c in vch and ismem(it['ins']) and it['hard'] > g): cand.append(it)
                forced = [it for it in cand if it['dl'] <= g]
                if forced: it = min(forced, key=lambda x: (x['dl'], x['prio']))
                else:
                    ok = [it for it in cand if it['tgt'] <= g and (used + it['w'] <= self.cap[g] or (used == 0)) and (not it['sep'] or g - lastv >= it['sep'])]
                    if not ok: break
                    it = min(ok, key=lambda x: (x['prio'], x['dl']))
                it['gap'] = g; used += it['w']; head[it['chain']] += 1
                if it['sep']: lastv = g
                ins = it['ins'] if isinstance(it['ins'], list) else [it['ins']]
                if isvalu(ins): vch.add(it['chain'])
                (second if it['chain'] in vch else first).extend(ins)
            self.mid[g] = first + second
        left = [it for it in self.items if it['gap'] is None]
        assert not left, left[:3]
    def load(self, g): return wt(self.front[g]) + wt(self.mid[g]) + wt(self.back[g])
    def emit(self):
        out = []
        for i, m in enumerate(self.mf):
            out.append(m); out += self.front[i] + self.mid[i] + self.back[i]
        return out

_reg = re.compile(r'\b([vas])\[(\d+):(\d+)\]|\b([vas])(\d+)\b')
def regs(op):
    r = set()
    for m in _reg.finditer(op):
        if m.group(1): r |= {(m.group(1), i) for i in range(int(m.group(2)), int(m.group(3)) + 1)}
        else: r.add((m.group(4), int(m.group(5))))
    return r
TRANS = ('v_exp_f32', 'v_rcp_f32', 'v_log_f32', 'v_rsq_f32', 'v_sqrt_f32')
def parse(line):
    line = line.split(';')[0].strip()
    if not line or line.endswith(':') or line.startswith('.'): return None
    p = line.split(None, 1)
    op = p[0]; ops = [o.strip() for o in p[1].split(',')] if len(p) > 1 else []
    return op, ops
def check_hazards(lines):
    ins = []
    for ln in lines:
        p = parse(ln)
        if p: ins.append((p[0], p[1], ln))
    msgs = []
    def states(i, j):
        s = 0
        for k in range(i + 1, j):
            op, ops, _ = ins[k]
            s += int(ops[0]) + 1 if op == 's_nop' else 1
        return s
    def isvalu(op): return op.startswith('v_') and not op.startswith('v_mfma')
    def wr(op, ops):
        if op.startswith('v_cmp'): return regs(ops[0]) | ({('vcc', 0)} if ops[0] == 'vcc' else set())
        if op.startswith('v_permlane'): return regs(ops[0]) | regs(ops[1])
        if op.startswith('v_') : return regs(ops[0]) | ({('vcc', 0)} if len(ops) > 1 and ops[1] == 'vcc' and '_co_' in op else set())
        if op.startswith('ds_read') or (op.startswith(('buffer_load', 'global_load')) and ' lds' not in ' '.join(ops) + ' '): return regs(ops[0])
        if op.startswith('s_') and not op.startswith(('s_cmp', 's_waitcnt', 's_cbranch', 's_branch', 's_barrier', 's_nop', 's_endpgm', 's_setprio', 's_sleep')): return regs(ops[0]) | ({('m0', 0)} if ops and ops[0] == 'm0' else set())
        return set()
    def rd(op, ops):
        if op.startswith(('buffer_store', 'global_store', 'ds_write', 'buffer_atomic', 's_cmp')): return set().union(*[regs(o) for o in ops]) if ops else set()
        if op.startswith('buffer_load') and ' lds' in ' '.join(ops) + ' ': return set().union(*[regs(o) for o in ops]) | {('m0', 0)}
        if op.startswith('v_permlane'): return regs(ops[0]) | regs(ops[1])
        r = set().union(*[regs(o) for o in ops[1:]]) if len(ops) > 1 else set()
        if op.startswith('v_cndmask') and ops[-1] == 'vcc': r.add(('vcc', 0))
        if op.startswith(('v_fmac',)): r |= regs(ops[0])
        return r
    for j, (op, ops, ln) in enumerate(ins):
        R, Wr = rd(op, ops), wr(op, ops)
        for i in range(j - 1, max(-1, j - 22), -1):
            pop, pops, pln = ins[i]
            PW = wr(pop, pops); need = 0
            if pop.startswith('v_mfma'):
                passes = 8 if '32x32' in pop else 4
                D = regs(pops[0]); C = regs(pops[3])
                if op.startswith('v_mfma'):
                    if D & (regs(ops[1]) | regs(ops[2])): need = passes + 4
                    elif D & regs(ops[3]) and regs(ops[3]) != D: need = passes + 2
                elif D & (R | Wr): need = passes + 4
                if isvalu(op) and C & Wr: need = max(need, passes - 1)
            elif isvalu(pop):
                vw = {r for r in PW if r[0] in 'va'}; sw = {r for r in PW if r[0] in ('s', 'vcc')}
                if op.startswith('v_mfma') and vw & R: need = 2
                if pop in TRANS and isvalu(op) and op not in TRANS and vw & R: need = max(need, 1)
                if op.startswith(('v_readlane', 'v_readfirstlane')) and vw & R: need = max(need, 1)
                if op.startswith('v_permlane') and vw & R: need = max(need, 2)
                if sw & R:
                    if op.startswith(('buffer_', 'global_')): need = max(need, 5)
                    elif op.startswith(('v_readlane', 'v_writelane')): need = max(need, 4)
                    elif isvalu(op): need = max(need, 2)
            elif pop.startswith(('buffer_store_dwordx4', 'buffer_store_dwordx3', 'global_store_dwordx4')):
                if regs(pops[0] if pop.startswith('buffer') else pops[1]) & Wr: need = 2
            elif pop.startswith('s_') and ('m0', 0) in PW and ('m0', 0) in R: need = 1
            if need and states(i, j) < need:
                msgs.append('need %d states have %d: [%s] -> [%s]' % (need, states(i, j), pln.strip(), ln.strip()))
    return msgs
```

```python
import sys
from asmlib import *

HDR = open('standalone__dense_activation_silu__prompt.s.ref').read().split('; Override launch')[0]
NAME = 'standalone__dense_activation_silu__prompt_kernel'
MF = 'v_mfma_f32_16x16x32_bf16'
LOG2E = 0x3fb8aa3b
WS_BYTES = 0x2000000
XCH_OFF = 0x1000000
FLG_OFF = 0x1800000
STAMP_OFF = 0xF000000
OOB = 0x7000000
ACC, AF, TA1, TA2, XV, WV, XR, HV, TMP, OB = 16, 128, 160, 176, 188, 192, 196, 198, 200, 208
TA3, WV2, OV, XO, NON, PV, PR, FV, PX, SC = 224, 236, 238, 239, 240, 241, 242, 243, 244, 4
RX = 80
STV = 250
S_TAB = 64

def srd(d, ptr, nbytes, add=None):
    o = []
    if add is None:
        o += ['s_mov_b32 s%d, s%d' % (d, ptr), 's_and_b32 s%d, s%d, 0xffff' % (d+1, ptr+1), 's_mov_b32 s%d, %d' % (d+2, nbytes)]
    else:
        o += ['s_add_u32 s%d, s%d, s%d' % (d, ptr, add), 's_addc_u32 s%d, s%d, 0' % (d+1, ptr+1), 's_and_b32 s%d, s%d, 0xffff' % (d+1, d+1),
              's_sub_u32 s%d, %d, s%d' % (d+2, nbytes, add)]
    o.append('s_mov_b32 s%d, 0x20000' % (d+3))
    return o

def fix_m0(lines):
    out = []
    for ln in lines:
        if out and ' lds' in ln and ln.startswith('buffer_load') and ' m0,' in out[-1]: out.append('s_nop 0')
        out.append(ln)
    return out

def silu_chunk(acc_tile, c_t0, outbuf, T, store):
    it = []
    for j in range(2):
        ob = outbuf(j)
        for tt in range(2):
            a = acc_tile(c_t0 + tt, j)
            for i in range(4): it.append('v_mul_f32 v%d, s56, v%d' % (T+i, a+i))
            for i in range(4): it.append(tr('v_exp_f32 v%d, v%d' % (T+i, T+i)))
            for i in range(4): it.append('v_add_f32 v%d, 1.0, v%d' % (T+i, T+i))
            for i in range(4): it.append(tr('v_rcp_f32 v%d, v%d' % (T+i, T+i)))
            for i in range(4): it.append('v_mul_f32 v%d, v%d, v%d' % (T+i, T+i, a+i))
            it.append('v_cvt_pk_bf16_f32 v%d, v%d, v%d' % (ob+2*tt, T, T+1))
            it.append('v_cvt_pk_bf16_f32 v%d, v%d, v%d' % (ob+2*tt+1, T+2, T+3))
        it.append(store(j, ob))
    return it

def gen(o):
    P = []; e = P.append
    ST = o.get('stamps')
    nst = [0]
    def stamp():
        if not ST: return []
        k = nst[0]; nst[0] += 1
        return ['s_memrealtime s[52:53]', 's_waitcnt lgkmcnt(0)', 'v_writelane_b32 v%d, s52, %d' % (STV, 2*k), 's_memtime s[52:53]', 's_waitcnt lgkmcnt(0)', 'v_writelane_b32 v%d, s52, %d' % (STV, 2*k+1)]
    NSLOT = 5; XBASE = 81920
    SPIN = o.get('spin', 200000)
    e('.globl %s' % NAME); e('.p2align 8'); e('.type %s,@function' % NAME); e(NAME + ':')
    e('s_cmp_ge_u32 s2, 256'); e('s_cbranch_scc1 L_end')
    e('s_load_dwordx4 s[4:7], s[0:1], 0'); e('s_load_dwordx4 s[8:11], s[0:1], 16'); e('s_load_dwordx4 s[12:15], s[0:1], 32')
    if ST: e('v_mov_b32 v%d, 0' % STV)
    P += stamp()
    e('v_lshrrev_b32 v1, 6, v0'); e('s_and_b32 s46, s2, 7'); e('v_readfirstlane_b32 s36, v1'); e('s_lshr_b32 s47, s2, 3')
    e('s_lshr_b32 s51, s46, 1'); e('s_lshl_b32 s37, s51, 2'); e('s_lshr_b32 s48, s47, 3'); e('s_add_u32 s37, s37, s48')
    e('s_and_b32 s42, s46, 1'); e('s_lshl_b32 s38, s42, 3'); e('s_and_b32 s49, s47, 7'); e('s_add_u32 s38, s38, s49')
    e('s_lshl_b32 s43, s48, 1'); e('s_add_u32 s43, s43, s49'); e('s_and_b32 s52, s51, %d' % o.get('ntrg', 1)); e('s_add_u32 s43, s43, s52'); e('s_and_b32 s43, s43, 7')
    e('v_and_b32 v0, 63, v0')
    rm = o.get('rot', 2)
    if rm == 0: e('s_mov_b32 s39, 0')
    elif rm == 1:
        e('s_lshl_b32 s39, s49, 1'); e('s_lshl_b32 s52, s48, 2'); e('s_add_u32 s39, s39, s52'); e('s_add_u32 s39, s39, s51'); e('s_and_b32 s39, s39, 15')
    elif rm == 2:
        e('s_add_u32 s39, s49, s48'); e('s_and_b32 s39, s39, 1'); e('s_lshl_b32 s39, s39, 2'); e('s_add_u32 s39, s39, s51'); e('s_lshl_b32 s52, s42, 1'); e('s_add_u32 s39, s39, s52'); e('s_lshl_b32 s39, s39, 1'); e('s_and_b32 s39, s39, 15')
    elif rm == 3:
        e('s_add_u32 s39, s49, s48'); e('s_and_b32 s39, s39, 3'); e('s_lshl_b32 s39, s39, 2'); e('s_add_u32 s39, s39, s51'); e('s_lshl_b32 s52, s42, 1'); e('s_add_u32 s39, s39, s52'); e('s_and_b32 s39, s39, 15')
    elif rm == 4:
        e('s_lshl_b32 s39, s42, 1'); e('s_add_u32 s39, s39, s51'); e('s_lshl_b32 s39, s39, 2'); e('s_and_b32 s39, s39, 15')
    e('s_mov_b32 s101, s51')
    e('s_mov_b32 s55, s49')
    e('s_and_b32 s50, s38, 1'); e('s_mul_i32 s51, s38, 448'); e('s_lshl_b32 s52, s50, 6'); e('s_sub_u32 s51, s51, s52')
    e('s_lshl_b32 s52, s50, 8'); e('s_add_u32 s58, s51, s52'); e('s_sub_u32 s59, s51, s52'); e('s_add_u32 s59, s59, 256')
    e('v_lshrrev_b32 v3, 3, v0'); e('v_and_b32 v4, 7, v0')
    e('s_lshl_b32 s46, s37, 2'); e('s_add_u32 s46, s46, s36'); e('s_lshl_b32 s47, s46, 16')
    e('v_lshrrev_b32 v5, 1, v3')
    for p in range(4):
        if p % 2 == 0: e('v_xor_b32 v6, v4, v5')
        else: e('v_or_b32 v7, 4, v5'); e('v_xor_b32 v6, v4, v7')
        e('v_lshlrev_b32 v6, 4, v6'); e('v_lshl_add_u32 v6, v3, 11, v6')
        e('s_add_u32 s48, s47, %d' % (8*p*2048 - 1024*p)); e('v_add_u32 v%d, s48, v6' % (XV+p))
    e('v_lshrrev_b32 v3, 4, v0'); e('v_bfe_u32 v4, v0, 1, 3'); e('v_and_b32 v5, 1, v0'); e('v_lshlrev_b32 v5, 4, v5')
    e('s_mul_i32 s47, s36, %d' % (16*7168)); e('s_movk_i32 s48, 7168'); e('v_mul_lo_u32 v8, v3, s48'); e('v_add_u32 v8, v8, v5')
    for p in range(4):
        if p < 2: e('v_xor_b32 v6, v4, v3')
        else: e('v_or_b32 v7, 4, v3'); e('v_xor_b32 v6, v4, v7')
        e('v_lshl_add_u32 v6, v6, 5, v8')
        e('s_add_u32 s48, s47, %d' % (4*p*7168 - 1024*p)); e('v_add_u32 v%d, s48, v6' % (WV+p))
    e('s_lshl_b32 s44, s36, 12')
    e('s_mul_i32 s45, s36, 20480'); e('s_add_u32 s45, s45, %d' % XBASE)
    e('s_lshl_b32 s40, s39, 7')
    e('s_waitcnt lgkmcnt(0)')
    P += srd(16, 4, 2048*1024*2); P += srd(20, 6, 1024*3584*2, 58); P += srd(24, 6, 1024*3584*2, 59)
    def g1_loads(sg):
        slot = sg % NSLOT; g = []
        cur, nxt = (40, 3)[sg % 2], (3, 40)[sg % 2]
        g.append('s_add_u32 m0, s44, %d' % (slot*16384))
        g.append('s_mul_i32 s41, s%d, 3584' % cur)
        wsrd = 20 if sg < 16 else 24
        for p in range(4): g.append(vm('buffer_load_dwordx4 v%d, s[%d:%d], s41 offen offset:%d lds' % (WV+p, wsrd, wsrd+3, 1024*p), ('w', sg)))
        if sg < 16: g.append('s_add_u32 m0, s45, %d' % (slot*4096))
        g.append('s_add_u32 s%d, s%d, 128' % (nxt, cur))
        if sg < 16:
            for p in range(4): g.append(vm('buffer_load_dwordx4 v%d, s[16:19], s%d offen offset:%d lds' % (XV+p, cur, 1024*p), ('w', sg)))
        g.append('s_and_b32 s%d, s%d, 2047' % (nxt, nxt))
        return g
    P += g1_loads(0)
    if o.get('cpf', 1):
        e('s_getpc_b64 s[46:47]'); e('L_pf:'); e('v_min_u32 v1, 3, v0'); e('v_lshlrev_b32 v1, 7, v1'); e('s_lshr_b32 s48, s2, 3'); e('s_lshl_b32 s48, s48, 2'); e('s_add_u32 s48, s48, s36'); e('s_lshl_b32 s48, s48, 9')
        e('v_add_u32 v1, s48, v1'); e('s_mov_b32 s48, L_end-L_pf'); e('v_min_u32 v9, s48, v1'); e(vm('global_load_dword v2, v9, s[46:47]'))
    P += srd(32, 14, WS_BYTES); P += srd(28, 10, 2048*1024*2)
    e('s_lshl_b32 s46, s43, 8'); e('s_lshl_b32 s47, s42, 7'); e('s_add_u32 s48, s46, s47'); e('s_xor_b32 s47, s47, 128'); e('s_add_u32 s47, s46, s47')
    P += srd(92, 8, 3584*1024*2, 47); P += srd(96, 8, 3584*1024*2, 48); e('s_mov_b32 s39, s47')
    e('v_lshrrev_b32 v3, 4, v0')
    e('v_and_b32 v4, 15, v0'); e('v_lshlrev_b32 v4, 11, v4'); e('v_and_b32 v5, 1, v3'); e('v_lshl_add_u32 v4, v5, 5, v4'); e('v_lshrrev_b32 v5, 1, v3'); e('v_lshl_add_u32 v4, v5, 4, v4')
    e('s_lshl_b32 s46, s37, 2'); e('s_add_u32 s46, s46, s36'); e('s_lshl_b32 s47, s46, 16'); e('s_add_u32 s47, s47, s48'); e('v_add_u32 v%d, s47, v4' % OV)
    e('s_mul_i32 s46, s46, %d' % (112*2048)); e('v_lshlrev_b32 v4, 4, v0'); e('v_add_u32 v%d, s46, v4' % HV)
    e('s_lshl_b32 s46, s36, 13'); e('s_add_u32 s46, s46, %d' % XCH_OFF); e('v_add_u32 v%d, s46, v4' % XO)
    P += srd(4, 12, 256)
    e('s_lshl_b32 s46, s37, 1'); e('s_add_u32 s46, s46, s42'); e('s_lshl_b32 s46, s46, 7'); e('s_add_u32 s46, s46, %d' % FLG_OFF)
    e('s_cmp_eq_u32 s36, 0'); e('s_cselect_b32 s8, s46, %d' % OOB); e('s_add_u32 s9, s8, 4096'); e('s_add_u32 s10, s8, 8192'); e('s_xor_b32 s11, s10, 128')
    e('s_lshl_b32 s12, s2, 15'); e('s_xor_b32 s13, s12, 32768')
    e('s_add_u32 s14, s12, 4096'); e('s_add_u32 s15, s13, 4096')
    e('v_and_b32 v4, 7, v0'); e('v_lshlrev_b32 v%d, 2, v4' % PV)
    e('s_lshl_b32 s46, s55, 2'); e('v_mov_b32 v%d, s46' % PX); e('v_mov_b32 v4, %d' % OOB); e('v_cmp_eq_u32 vcc, 0, v0'); e('s_nop 1'); e('v_cndmask_b32 v%d, v4, v%d, vcc' % (FV, PX))
    e('s_mov_b32 s1, %d' % FLG_OFF); e('s_or_b32 s46, s2, s36'); e('s_cmp_eq_u32 s46, 0'); e('s_cselect_b32 s1, s1, %d' % OOB)
    e('v_lshrrev_b32 v4, 1, v0'); e('v_lshlrev_b32 v4, 7, v4'); e('v_and_b32 v5, 1, v0'); e('v_lshl_add_u32 v1, v5, 4, v4')
    for i in range(3):
        if i: e('s_add_u32 s1, s1, 4096')
        P.append(vm('buffer_load_dwordx4 v[%d:%d], v1, s[32:35], s1 offen sc1' % (RX+4*i, RX+4*i+3), ('scan', i)))
    P += g1_loads(1)
    e('v_lshrrev_b32 v3, 4, v0'); e('v_bfe_u32 v4, v0, 2, 2'); e('v_and_b32 v5, 3, v0')
    e('v_lshl_add_u32 v6, v3, 3, v4'); e('v_lshlrev_b32 v6, 8, v6'); e('v_lshl_add_u32 v6, v5, 3, v6')
    e('v_and_b32 v7, 1, v3'); e('v_lshl_add_u32 v7, v7, 2, v4')
    for t in range(8):
        e('v_xor_b32 v8, %d, v7' % t); e('v_lshl_add_u32 v%d, v8, 5, v6' % (TA1+t)); e('v_add_u32 v%d, 0x10000, v%d' % (TA1+8+t, TA1+t))
    e('s_lshl_b32 s46, s50, 1')
    for t in range(6):
        e('s_add_u32 s47, s46, %d' % t); e('v_xor_b32 v8, s47, v7'); e('v_lshl_add_u32 v%d, v8, 5, v6' % (TA2+t)); e('v_add_u32 v%d, 0x10000, v%d' % (TA2+6+t, TA2+t))
    e('v_lshl_add_u32 v6, v3, 2, v4'); e('v_bfe_u32 v7, v6, 1, 2'); e('v_lshlrev_b32 v6, 7, v6'); e('v_lshl_add_u32 v6, v5, 3, v6')
    for t in range(4):
        e('v_xor_b32 v8, %d, v7' % t); e('v_lshl_add_u32 v%d, v8, 5, v6' % (TA3+t)); e('v_add_u32 v%d, 0x10000, v%d' % (TA3+4+t, TA3+t)); e('v_add_u32 v%d, 0x20000, v%d' % (TA3+8+t, TA3+t))
    e('v_and_b32 v4, 15, v0'); e('v_lshrrev_b32 v5, 1, v4'); e('v_xor_b32 v5, v5, v3')
    e('v_lshlrev_b32 v4, 7, v4'); e('v_add_u32 v4, s45, v4')
    e('v_lshl_add_u32 v%d, v5, 4, v4' % XR); e('v_xor_b32 v5, 4, v5'); e('v_lshl_add_u32 v%d, v5, 4, v4' % (XR+1))
    e('v_lshrrev_b32 v3, 3, v0'); e('v_bfe_u32 v4, v0, 1, 2'); e('v_lshrrev_b32 v5, 1, v3'); e('v_xor_b32 v4, v4, v5')
    e('v_and_b32 v5, 1, v0'); e('v_lshlrev_b32 v5, 4, v5'); e('v_lshl_add_u32 v4, v4, 5, v5'); e('v_lshl_add_u32 v4, v3, 11, v4')
    e('s_lshl_b32 s46, s36, 15'); e('v_add_u32 v%d, s46, v4' % WV2); e('v_add_u32 v%d, %d, v%d' % (WV2+1, 8*2048 - 1024, WV2))
    e('s_lshl_b32 s62, s36, 11')
    e('s_mul_i32 s46, s38, 7'); e('s_mul_i32 s47, s50, 3'); e('s_add_u32 s47, s47, s46'); e('s_lshl_b32 s58, s47, 11'); e('s_add_u32 s59, s58, 4096')
    e('s_lshl_b32 s47, s50, 2'); e('s_sub_u32 s47, s46, s47'); e('s_add_u32 s47, s47, 4'); e('s_lshl_b32 s60, s47, 11'); e('s_add_u32 s61, s60, 4096')
    e('s_mov_b32 s56, 0x%x' % (LOG2E | 0x80000000)); e('s_mov_b32 s57, 32768')
    if o.get('norot2'): e('s_mov_b32 s55, 0')
    e('v_lshrrev_b32 v3, 1, v0'); e('v_add_u32 v3, s55, v3'); e('v_and_b32 v3, 7, v3')
    e('v_lshrrev_b32 v4, 1, v3'); e('v_mul_u32_u24 v4, 7, v4'); e('v_and_b32 v3, 1, v3'); e('v_mul_u32_u24 v3, 5, v3'); e('v_add_u32 v4, v4, v3'); e('s_lshr_b32 s46, s101, 1'); e('s_and_b32 s46, s46, %d' % o.get('ntrg', 1)); e('v_xor_b32 v3, s46, v0'); e('v_and_b32 v3, 1, v3'); e('v_add_u32 v4, v4, v3')
    e('v_subrev_u32 v3, 16, v0'); e('v_and_b32 v3, 63, v3'); e('v_mul_u32_u24 v5, 171, v3'); e('v_lshrrev_b32 v5, 9, v5')
    e('v_mul_u32_u24 v6, 3, v5'); e('v_sub_u32 v3, v3, v6'); e('s_and_b32 s46, s101, %d' % (3*o.get('ntrg', 1))); e('v_add_u32 v3, s46, v3'); e('v_mul_u32_u24 v6, 171, v3'); e('v_lshrrev_b32 v6, 9, v6'); e('v_mul_u32_u24 v6, 3, v6'); e('v_sub_u32 v3, v3, v6'); e('s_lshr_b32 s46, s55, 1'); e('v_add_u32 v5, s46, v5'); e('v_and_b32 v5, 3, v5')
    e('v_mul_u32_u24 v5, 7, v5'); e('v_add3_u32 v5, v5, v3, 2')
    e('v_cmp_gt_u32 vcc, 16, v0'); e('s_mul_i32 s46, s42, 28'); e('s_nop 0'); e('v_cndmask_b32 v4, v5, v4, vcc'); e('v_add_u32 v4, s46, v4'); e('v_lshlrev_b32 v4, 12, v4'); e('s_nop 0')
    for i in range(28): e('v_readlane_b32 s%d, v4, %d' % (S_TAB+i, i))
    e('v_mov_b32 v1, 0')
    TV = 245
    e('s_lshl_b32 s46, s2, 2'); e('s_add_u32 s46, s46, s36'); e('s_mul_i32 s46, s46, %d' % (56*128)); e('s_sub_u32 s46, s46, s39'); e('v_min_u32 v4, 55, v0'); e('v_lshlrev_b32 v4, 7, v4'); e('v_add_u32 v%d, s46, v4' % TV)
    e('s_lshr_b32 s39, s2, 3'); e('s_mul_i32 s46, s39, %d' % (65536 // max(1, o.get('nt', 6)) + 1)); e('s_lshr_b32 s46, s46, 16'); e('s_mul_i32 s46, s46, %d' % max(1, o.get('nt', 6))); e('s_sub_u32 s39, s39, s46')
    ops = []
    units = []
    for i in range(12): units += [(i, 0, 32+i), (i, 1, 32+i)]
    for i in range(12, 28): units.append((i, 0, 44 + (i-12)//2))
    for i in range(12, 28): units.append((i, 1, 52 + (i-12)//2))
    useq = list(range(10, 20)) + [4, 5, 6, 7, 8, 9, 0, 1, 2, 3]
    upos = {(i, h): useq[u % 20] for u, (i, h, s) in enumerate(units)}
    def acc(t, j): return ACC + (t*2+j)*4
    for ps, nt in ((0, 8), (1, 6)):
        for u in range(32):
            sg = ps*16 + u//2
            for t in range(nt):
                off = (sg % NSLOT)*16384 + (u % 2)*8192; areg = (TA1, TA2)[ps] + t
                if off >= 65536: areg += nt; off -= 65536
                ops.append(dict(seg=sg, areg=areg, off=off, d2=1024, tile=ps*8+t, b=u*8, first=(u == 0), u=u, ps=ps, t=t))
    def g2op(i, h, st, t, seg, first):
        off = upos[(i, h)]*8192 + st*4096
        ops.append(dict(seg=seg, areg=TA3 + 4*(off >> 16) + t, off=off & 0xffff, d2=2048, tile=h*4+t, b=((i % 16)*2+st)*8, first=first, ps=2))
    for i in range(12):
        for st in range(2):
            for h in range(2):
                for t in range(4): g2op(i, h, st, t, 32+i, i == 0 and st == 0)
    for h in range(2):
        for i in range(12, 28):
            for st in range(2):
                for t in range(4): g2op(i, h, st, t, (44, 52)[h] + (i-12)//2, False)
    NSEG = 60; R = 8; N = len(ops)
    def rd(n):
        q = ops[n]; f = AF + (n % R)*4
        return [lds('ds_read_b64_tr_b16 v[%d:%d], v%d offset:%d' % (f, f+1, q['areg'], q['off']), ('a', n, 0)),
                lds('ds_read_b64_tr_b16 v[%d:%d], v%d offset:%d' % (f+2, f+3, q['areg'], q['off']+q['d2']), ('a', n, 1))]
    def xrd(sg):
        r = []
        for st in range(2):
            for j in range(2):
                a = ((sg*2+st)*2+j)*4
                r.append(lds('ds_read_b128 a[%d:%d], v%d offset:%d' % (a, a+3, XR+st, (sg % NSLOT)*4096 + 2048*j), ('x', sg*2+st, j)))
        return r
    S = Sched2(); fm = {}
    for n, q in enumerate(ops):
        f = AF + (n % R)*4
        for j in range(2):
            a = acc(q['tile'], j); b = q['b'] + j*4
            c = '0' if q['first'] else 'v[%d:%d]' % (a, a+3)
            i = S.add('%s v[%d:%d], v[%d:%d], a[%d:%d], %s' % (MF, a, a+3, f, f+3, b, b+3, c))
            if j == 0: fm[n] = i
    bar_gap = {}; bar_wait = {}; bar_list = {}
    seg_first = {}
    for n in range(N): seg_first.setdefault(ops[n]['seg'], n)
    WE = o.get('we', 4); LAT = o.get('lat', 6)
    first_wait = None
    for n in range(0, N, WE):
        tags = [('a', n+WE-1, 1)]
        q = ops[n]
        if q['ps'] == 0 and q['t'] == 0: tags += [('x', q['u'], 0), ('x', q['u'], 1)]
        if n: S.back[fm[n]-1].append(W(lds=tags))
        else: first_wait = W(lds=tags)
    for m in range(R, N):
        g = fm[m-R] + 1
        if ops[m]['seg'] != ops[m-1]['seg']:
            sg = ops[m]['seg']
            bar_wait[sg] = W(vm=[]); bar_list[sg] = [bar_wait[sg], 's_barrier']
            S.front[g] = bar_list[sg]; bar_gap[sg] = g
        dl = fm[m - m % WE] - 1 - LAT
        for r in rd(m): S.item('a', r, g, max(g, dl), prio=0)
    bar_gap[0] = -1; bar_gap[NSEG] = len(S.mf)
    plan = []
    for sg in range(2, 32): plan.append([max(0, sg-3), sg, g1_loads(sg), ('w', sg)])
    P_F1SET, P_F1CHK = o.get('f1set', 27), o.get('f1chk', 30)
    P_F2SET, P_F2CHK = o.get('f2set', 38), o.get('f2chk', 42)
    P_XSET, P_XCHK = o.get('xset', 56), o.get('xchk', 59)
    for u, (i, h, seg) in enumerate(units):
        if u < 10: early = o.get('u0', 17)
        elif u < 20: early = 27 + (u-10)//2 + 2
        else: early = units[u-20][2] + 2
        g = ['s_add_u32 m0, s62, %d' % (upos[(i, h)]*8192), 's_lshl_b32 s63, s%d, 5' % (S_TAB+i)]
        for p in range(2): g.append(vm('buffer_load_dwordx4 v%d, s[%d:%d], s63 offen offset:%d lds' % (WV2+p, 92+4*h, 95+4*h, 1024*p), ('u', u)))
        plan.append([early, seg, g, ('u', u)])
    for i in range(28):
        seg = 32+i if i < 12 else 44 + (i-12)//2
        early = max(16 + i + 2, P_F1CHK) if i < 16 else max(32 + (i-16) + 2, P_F2CHK)
        g = [vm('buffer_load_dwordx4 a[%d:%d], v%d, s[32:35], s%d offen offset:%d sc1' % (((i % 16)*4+k)*4, ((i % 16)*4+k)*4+3, HV, S_TAB+i, 1024*k), ('h', i)) for k in range(4)]
        plan.append([early, seg, g, ('h', i)])
    plan.sort(key=lambda x: (x[1], x[0]))
    def budget(p):
        if p < 2: return o.get('b0', 16)
        if p < 16: return 8
        if p < 32: return o.get('bp2', 6)
        if p < 44: return o.get('ba', 9)
        if p < 52: return o.get('bb', 10)
        return o.get('bc', 6)
    LEAD = o.get('lead', 2)
    per = {p: [] for p in range(NSEG)}
    todo = list(plan)
    for p in range(NSEG):
        used = 0; rest = []
        for it in todo:
            nv = sum(1 for x in it[2] if isinstance(x, I))
            if it[0] <= p and (used + nv <= budget(p) or it[1] - LEAD <= p):
                per[p].append(it); used += nv
            else: rest.append(it)
        todo = rest
    assert not todo
    for p in range(NSEG):
        for it in per[p]:
            assert p < it[1], (p, it[3])
            bar_wait[it[1]].vm.append(it[3])
    bar_wait[1].vm.append(('w', 1))
    if o.get('plan'):
        for p in range(NSEG): print(p, [it[3] for it in per[p]], file=sys.stderr)
    slow = []
    def check(lbl, tag, reload):
        nonlocal slow
        slow += [lbl + '_slow:', 's_mov_b32 s46, %d' % SPIN, lbl + '_spin:', reload, 's_waitcnt vmcnt(0)', 's_sub_u32 s46, s46, 1', 's_cmp_eq_u32 s46, 0', 's_cbranch_scc1 %s_ok' % lbl,
                 'v_cmp_ne_u32 vcc, s54, v%d' % PR, 's_nop 1', 's_cbranch_vccnz %s_spin' % lbl] + (['s_sub_u32 s46, %d, s46' % SPIN, 'v_writelane_b32 v%d, s46, %d' % (STV, 61 + len(slow)//14)] if ST else []) + ['s_branch %s_ok' % lbl]
        return [W(vm=[tag]), 'v_cmp_ne_u32 vcc, s54, v%d' % PR, 's_nop 1', 's_cbranch_vccnz %s_slow' % lbl, lbl + '_ok:']
    extra = {p: [] for p in range(NSEG)}
    PL = o.get('plag', 2)
    for lbl, pset, pchk, sset, schk, vchk in (('L_f1', P_F1SET, P_F1CHK, 8, 8, PV), ('L_f2', P_F2SET, P_F2CHK, 9, 9, PV), ('L_fx', P_XSET, P_XCHK, 10, 11, PX)):
        extra[pset].append(vm('buffer_store_dword v%d, v%d, s[32:35], s%d offen sc1' % (NON, FV, sset)))
        ld = 'buffer_load_dword v%d, v%d, s[32:35], s%d offen sc1' % (PR, vchk, schk)
        pl = 1 if lbl == 'L_fx' else PL
        extra[pchk-pl].append(vm(ld, lbl))
        bar_list[pchk][0:0] = check(lbl, lbl, ld)
    mk = [W(vm=[('scan', 2)]), 's_cmp_ge_u32 s1, %d' % OOB, 's_cbranch_scc1 L_mk_done', 'v_readfirstlane_b32 s46, v%d' % RX, 'L_mk:', 's_add_u32 s46, s46, 1', 's_cmp_eq_u32 s46, 0', 's_cbranch_scc1 L_mk']
    for i in range(12): mk += ['v_cmp_eq_u32 vcc, s46, v%d' % (RX+i), 's_nop 1', 's_cbranch_vccnz L_mk']
    mk += ['v_mov_b32 v%d, s46' % NON, 'L_mk_done:', 's_sub_u32 s1, s1, %d' % (FLG_OFF + 8192)]
    bar_list[2] += mk
    extra[2].append(vm('buffer_store_dword v%d, v%d, s[4:7], s1 offen sc1' % (NON, FV)))
    PN = o.get('pn', 11)
    e2 = 'buffer_load_dword v%d, v1, s[4:7], 0 offen sc1' % PR
    extra[PN].append(vm(e2, 'non'))
    slow += ['L_n_slow:', 's_mov_b32 s46, %d' % SPIN, 'L_n_spin:', e2, 's_waitcnt vmcnt(0)', 'v_readfirstlane_b32 s54, v%d' % PR, 's_sub_u32 s46, s46, 1', 's_cmp_eq_u32 s46, 0', 's_cbranch_scc1 L_n_ok',
             's_cmp_eq_u32 s54, 0', 's_cbranch_scc1 L_n_spin', 's_branch L_n_ok']
    bar_list[PN+3] += [W(vm=['non']), 'v_readfirstlane_b32 s54, v%d' % PR, 's_nop 0', 's_cmp_eq_u32 s54, 0', 's_cbranch_scc1 L_n_slow', 'L_n_ok:', 'v_mov_b32 v%d, s54' % NON, 's_cmp_eq_u32 s36, 0', 's_cselect_b32 s54, s54, 0']
    if o.get('fine'):
        for sg in range(1, NSEG):
            S.back[bar_gap[sg]-1][0:0] = ['v_writelane_b32 v251, s52, %d' % (sg-1), 'v_writelane_b32 v252, s50, %d' % (sg-1)]; bar_list[sg] += ['s_memtime s[52:53]', 's_memrealtime s[50:51]']
    if o.get('touch', 1):
        for k in range(o.get('nt', 6)):
            p = o.get('t0', 14) + k
            extra[p].append(['s_cmp_eq_u32 s39, %d' % k, 's_cbranch_scc1 L_t%d' % k, 'L_t%d_ok:' % k])
            slow += ['L_t%d:' % k, 'buffer_load_dword v2, v%d, s[92:95], 0 offen' % TV, 's_branch L_t%d_ok' % k]
    def mkstore(sreg, c, tag):
        return lambda j, ob: vm('buffer_store_dwordx4 v[%d:%d], v%d, s[32:35], s%d offen offset:%d sc1' % (ob, ob+3, HV, sreg + c//2, (c % 2)*2048 + j*1024), tag)
    epi1 = []; epi2 = []
    for c in range(4): epi1 += silu_chunk(acc, 2*c, lambda j, c=c: OB + ((c % 2)*2+j)*4, TMP + (c % 2)*4, mkstore(58, c, 'hs1'))
    for c in range(3): epi2 += silu_chunk(acc, 8+2*c, lambda j, c=c: OB + ((c % 2)*2+j)*4, TMP + (c % 2)*4, mkstore(60, c, 'hs2'))
    xst = [vm('buffer_store_dwordx4 v[%d:%d], v%d, s[32:35], s%d offen offset:%d sc1' % (ACC+4*i, ACC+4*i+3, XO, 12 + 2*(i//4), 1024*(i % 4)), 'xs') for i in range(8)]
    xld = [vm('buffer_load_dwordx4 v[%d:%d], v%d, s[32:35], s%d offen offset:%d sc1' % (RX+4*i, RX+4*i+3, XO, 13 + 2*(i//4), 1024*(i % 4)), 'xl') for i in range(8)]
    SEP = o.get('sep', 2)
    def isv(x): return isinstance(x, I) and x.kind == 'vm'
    def spread(chain, L, g0, g1, prio, dl=None, sep=None, slack=3, vonly=False):
        w_ = (lambda x: 1 if isv(x) else 0) if vonly else wt
        tot = max(1, sum(w_(x) for x in L)); acc_ = 0; its = []
        for x in L:
            tgt = g0 + int(acc_ * (g1 - g0) / tot)
            if vonly and not isv(x): tgt = max(g0, tgt - 2)
            its.append(S.item(chain, x, g0, min((g1 if dl is None else dl) - 1, tgt + slack), tgt, prio=prio, sep=(SEP if sep is None else sep) if isv(x) else 0, hard=(g1 if dl is None else dl) - 1)); acc_ += w_(x)
        return its
    for p in range(NSEG):
        g0, g1 = max(bar_gap[p], 0), bar_gap[p+1]
        for k, x in enumerate(extra[p]): S.item(('ex', p, k), x, g0, g0+6, prio=1)
        if 1 <= p < 16:
            xr = xrd(p)
            for k, x in enumerate(xr): S.item('x', x, g0, fm[seg_first[p] + 8*(k//2)] - 1 - LAT, prio=1)
        L = []
        for it in per[p]: L += it[2]
        if p == P_XCHK: spread('xl', xld, g0, g0+8, 1, dl=g0+24, sep=1)
        if L: spread('v', L, g0 + 1, g1, 2, dl=g1, vonly=True, slack=o.get('vslack', 3))
    p2s, As, Cs = fm[seg_first[16]], fm[seg_first[32]], fm[seg_first[52]]
    def epi(chain, L, g0, cap, span, lim):
        for g in range(g0, g0 + span): S.cap[g] = max(S.cap[g], cap)
        return spread(chain, L, g0, g0 + span, 3, dl=lim, sep=0, slack=o.get('eslack', 2))
    e1 = epi('e1', epi1, p2s + 1, o.get('e1cap', 4), o.get('e1span', 192), bar_gap[o.get('f1dl', P_F1SET-2)])
    e2_ = epi('e2', epi2, As + 5, o.get('e2cap', 5), o.get('e2span', 128), bar_gap[o.get('f2dl', P_F2SET-1)])
    xs_ = spread('xs', xst, Cs + 5, Cs + 5 + o.get('xspan', 32), 1, dl=bar_gap[P_XSET-1], sep=o.get('xsep', 4))
    bar_wait[P_F1SET].vm.append('hs1'); bar_wait[P_F2SET].vm.append('hs2'); bar_wait[P_XSET].vm.append('xs')
    S.run()
    if o.get('gaps'): print('epi1 ends gap', e1[-1]['gap'], 'lim', bar_gap[P_F1SET], 'epi2 ends', e2_[-1]['gap'], bar_gap[P_F2SET], 'xs ends', xs_[-1]['gap'], file=sys.stderr)
    for w in bar_wait.values():
        if not w.vm: w.vm = None
    P.append(W(vm=('w', 0))); e('s_barrier')
    P += stamp()
    if o.get('fine'): e('s_memtime s[52:53]'); e('s_memrealtime s[50:51]')
    P += xrd(0)
    for n in range(R): P += rd(n)
    P.append(first_wait)
    body = S.emit()
    if ST:
        marks = [seg_first[s] for s in o.get('stseg', (4, 8, 16, 24, 32, 38, 44, 48, 52, 56))] if not o.get('fine') else []
        sts = [stamp() for _ in marks]
        for n, st_ in reversed(list(zip(marks, sts))):
            k = next(i for i, x in enumerate(body) if x is S.mf[fm[n]])
            body[k:k] = st_
    P += [x for x in body if not (isinstance(x, W) and x.vm is None and x.lds is None)]
    if o.get('fine'): e('v_writelane_b32 v251, s52, 59'); e('v_writelane_b32 v252, s50, 59')
    if o.get('gaps'):
        for p in range(NSEG):
            g0, g1 = bar_gap[p], bar_gap[p+1]
            ld = [S.load(g) for g in range(max(g0, 0), min(g1, len(S.mf)))]
            print(p, len(ld), 'sum', sum(ld), 'over2', sum(max(0, x-2) for x in ld), ''.join(str(min(x, 9)) for x in ld), file=sys.stderr)
    P += stamp()
    P.append(W(vm=['xl'])); e('s_nop 6')
    P += stamp()
    k = 0
    for j in range(2):
        for u in range(2):
            ob = OB + (k % 2)*4; k += 1
            for tt in range(2):
                a = acc(4+2*u+tt, j); r = RX + ((2*u+tt)*2+j)*4
                for i in range(4): e('v_add_f32 v%d, v%d, v%d' % (a+i, a+i, r+i))
                e('v_cvt_pk_bf16_f32 v%d, v%d, v%d' % (ob+2*tt, a, a+1)); e('v_cvt_pk_bf16_f32 v%d, v%d, v%d' % (ob+2*tt+1, a+2, a+3))
            e('s_nop 1')
            e('v_permlane16_swap_b32 v%d, v%d' % (ob, ob+2)); e('v_permlane16_swap_b32 v%d, v%d' % (ob+1, ob+3))
            P.append(vm('buffer_store_dwordx4 v[%d:%d], v%d, s[28:31], %s offen offset:%d' % (ob, ob+3, OV, 's57' if j else '0', 64*u)))
    if ST:
        P += stamp(); e('s_waitcnt vmcnt(0)'); P += stamp()
        e('s_mov_b32 s34, 0x10000000')
        e('s_lshl_b32 s46, s2, 2'); e('s_add_u32 s46, s46, s36'); e('s_lshl_b32 s46, s46, 8'); e('s_add_u32 s46, s46, %d' % STAMP_OFF)
        e('v_lshlrev_b32 v1, 2, v0'); e('buffer_store_dword v%d, v1, s[32:35], s46 offen' % STV)
        e('s_add_u32 s46, s46, 0x100000'); e('buffer_store_dword v251, v1, s[32:35], s46 offen'); e('s_add_u32 s46, s46, 0x100000'); e('buffer_store_dword v252, v1, s[32:35], s46 offen'); e('s_waitcnt vmcnt(0)')
    e('L_end:'); e('s_endpgm')
    P += slow
    L = fix_m0(resolve(P))
    for m in check_hazards(L): print('HAZARD', m, file=sys.stderr)
    kd = ['.amdhsa_kernel %s' % NAME, '  .amdhsa_next_free_vgpr 512', '  .amdhsa_next_free_sgpr 102', '  .amdhsa_accum_offset 256',
          '  .amdhsa_group_segment_fixed_size 0', '  .amdhsa_kernarg_size 48', '  .amdhsa_user_sgpr_count 2',
          '  .amdhsa_user_sgpr_kernarg_segment_ptr 1', '  .amdhsa_system_sgpr_workgroup_id_x 1', '  .amdhsa_float_denorm_mode_32 3', '.end_amdhsa_kernel']
    s = HDR + '; @launch grid=(256,1,1) block=(256,1,1) lds=163840\n.amdgcn_target "amdgcn-amd-amdhsa--gfx950"\n.text\n'
    s += '\n'.join(L) + '\n.section .rodata,"a"\n.p2align 6\n' + '\n'.join(kd) + '\n'
    if ST: print('stamps:', nst[0], file=sys.stderr)
    return s

def opts(args):
    o = {}
    for a in args:
        k, v = a.split('=')
        try: v = float(v) if '.' in v else int(v)
        except ValueError: pass
        o[k] = v
    return o
if __name__ == '__main__':
    open(sys.argv[1], 'w').write(gen(opts(sys.argv[2:])))
```

```python
import sys
from asmlib import *

HDR = open('standalone__dense_activation_silu__prompt.s.ref').read().split('; Override launch')[0]
NAME = 'standalone__dense_activation_silu__prompt_kernel'
MF = 'v_mfma_f32_16x16x32_bf16'
LOG2E = 0x3fb8aa3b
WS_BYTES = 0x2000000
XCH_OFF = 0x1000000
FLG_OFF = 0x1800000
STAMP_OFF = 0xF000000
OOB = 0x7000000
ACC, AF, TA1, TA2, XV, WV, XR, HV, TMP, OB = 16, 128, 160, 176, 188, 192, 196, 198, 200, 208
TA3, WV2, OV, XO, NON, PV, PR, FV, PX, SC = 224, 236, 238, 239, 240, 241, 242, 243, 244, 4
RX = 80
STV = 250
S_TAB = 64

def srd(d, ptr, nbytes, add=None):
    o = []
    if add is None:
        o += ['s_mov_b32 s%d, s%d' % (d, ptr), 's_and_b32 s%d, s%d, 0xffff' % (d+1, ptr+1), 's_mov_b32 s%d, %d' % (d+2, nbytes)]
    else:
        o += ['s_add_u32 s%d, s%d, s%d' % (d, ptr, add), 's_addc_u32 s%d, s%d, 0' % (d+1, ptr+1), 's_and_b32 s%d, s%d, 0xffff' % (d+1, d+1),
              's_sub_u32 s%d, %d, s%d' % (d+2, nbytes, add)]
    o.append('s_mov_b32 s%d, 0x20000' % (d+3))
    return o

def fix_m0(lines):
    out = []
    for ln in lines:
        if out and ' lds' in ln and ln.startswith('buffer_load') and ' m0,' in out[-1]: out.append('s_nop 0')
        out.append(ln)
    return out

def silu_chunk(acc_tile, c_t0, outbuf, T, store):
    it = []
    for j in range(2):
        ob = outbuf(j)
        for tt in range(2):
            a = acc_tile(c_t0 + tt, j)
            for i in range(4): it.append('v_mul_f32 v%d, s56, v%d' % (T+i, a+i))
            for i in range(4): it.append(tr('v_exp_f32 v%d, v%d' % (T+i, T+i)))
            for i in range(4): it.append('v_add_f32 v%d, 1.0, v%d' % (T+i, T+i))
            for i in range(4): it.append(tr('v_rcp_f32 v%d, v%d' % (T+i, T+i)))
            for i in range(4): it.append('v_mul_f32 v%d, v%d, v%d' % (T+i, T+i, a+i))
            it.append('v_cvt_pk_bf16_f32 v%d, v%d, v%d' % (ob+2*tt, T, T+1))
            it.append('v_cvt_pk_bf16_f32 v%d, v%d, v%d' % (ob+2*tt+1, T+2, T+3))
        it.append(store(j, ob))
    return it

def gen(o):
    P = []; e = P.append
    ST = o.get('stamps')
    nst = [0]
    def stamp():
        if not ST: return []
        k = nst[0]; nst[0] += 1
        return ['s_memrealtime s[52:53]', 's_waitcnt lgkmcnt(0)', 'v_writelane_b32 v%d, s52, %d' % (STV, 2*k), 's_memtime s[52:53]', 's_waitcnt lgkmcnt(0)', 'v_writelane_b32 v%d, s52, %d' % (STV, 2*k+1)]
    NSLOT = 5; XBASE = 81920
    SPIN = o.get('spin', 200000)
    e('.globl %s' % NAME); e('.p2align 8'); e('.type %s,@function' % NAME); e(NAME + ':')
    e('s_cmp_ge_u32 s2, 256'); e('s_cbranch_scc1 L_end')
    e('s_load_dwordx4 s[4:7], s[0:1], 0'); e('s_load_dwordx4 s[8:11], s[0:1], 16'); e('s_load_dwordx4 s[12:15], s[0:1], 32')
    if ST: e('v_mov_b32 v%d, 0' % STV)
    P += stamp()
    e('v_lshrrev_b32 v1, 6, v0'); e('s_and_b32 s46, s2, 7'); e('v_readfirstlane_b32 s36, v1'); e('s_lshr_b32 s47, s2, 3')
    e('s_lshr_b32 s51, s46, 1'); e('s_lshl_b32 s37, s51, 2'); e('s_lshr_b32 s48, s47, 3'); e('s_add_u32 s37, s37, s48')
    e('s_and_b32 s42, s46, 1'); e('s_lshl_b32 s38, s42, 3'); e('s_and_b32 s49, s47, 7'); e('s_add_u32 s38, s38, s49')
    e('s_lshl_b32 s43, s48, 1'); e('s_add_u32 s43, s43, s49'); e('s_and_b32 s52, s51, %d' % o.get('ntrg', 1)); e('s_add_u32 s43, s43, s52'); e('s_and_b32 s43, s43, 7')
    e('v_and_b32 v0, 63, v0')
    rm = o.get('rot', 2)
    if rm == 0: e('s_mov_b32 s39, 0')
    elif rm == 1:
        e('s_lshl_b32 s39, s49, 1'); e('s_lshl_b32 s52, s48, 2'); e('s_add_u32 s39, s39, s52'); e('s_add_u32 s39, s39, s51'); e('s_and_b32 s39, s39, 15')
    elif rm == 2:
        e('s_add_u32 s39, s49, s48'); e('s_and_b32 s39, s39, 1'); e('s_lshl_b32 s39, s39, 2'); e('s_add_u32 s39, s39, s51'); e('s_lshl_b32 s52, s42, 1'); e('s_add_u32 s39, s39, s52'); e('s_lshl_b32 s39, s39, 1'); e('s_and_b32 s39, s39, 15')
    elif rm == 3:
        e('s_add_u32 s39, s49, s48'); e('s_and_b32 s39, s39, 3'); e('s_lshl_b32 s39, s39, 2'); e('s_add_u32 s39, s39, s51'); e('s_lshl_b32 s52, s42, 1'); e('s_add_u32 s39, s39, s52'); e('s_and_b32 s39, s39, 15')
    elif rm == 4:
        e('s_lshl_b32 s39, s42, 1'); e('s_add_u32 s39, s39, s51'); e('s_lshl_b32 s39, s39, 2'); e('s_and_b32 s39, s39, 15')
    e('s_mov_b32 s101, s51')
    e('s_mov_b32 s55, s49')
    e('s_and_b32 s50, s38, 1'); e('s_mul_i32 s51, s38, 448'); e('s_lshl_b32 s52, s50, 6'); e('s_sub_u32 s51, s51, s52')
    e('s_lshl_b32 s52, s50, 8'); e('s_add_u32 s58, s51, s52'); e('s_sub_u32 s59, s51, s52'); e('s_add_u32 s59, s59, 256')
    e('v_lshrrev_b32 v3, 3, v0'); e('v_and_b32 v4, 7, v0')
    e('s_lshl_b32 s46, s37, 2'); e('s_add_u32 s46, s46, s36'); e('s_lshl_b32 s47, s46, 16')
    e('v_lshrrev_b32 v5, 1, v3')
    for p in range(4):
        if p % 2 == 0: e('v_xor_b32 v6, v4, v5')
        else: e('v_or_b32 v7, 4, v5'); e('v_xor_b32 v6, v4, v7')
        e('v_lshlrev_b32 v6, 4, v6'); e('v_lshl_add_u32 v6, v3, 11, v6')
        e('s_add_u32 s48, s47, %d' % (8*p*2048 - 1024*p)); e('v_add_u32 v%d, s48, v6' % (XV+p))
    e('v_lshrrev_b32 v3, 4, v0'); e('v_bfe_u32 v4, v0, 1, 3'); e('v_and_b32 v5, 1, v0'); e('v_lshlrev_b32 v5, 4, v5')
    e('s_mul_i32 s47, s36, %d' % (16*7168)); e('s_movk_i32 s48, 7168'); e('v_mul_lo_u32 v8, v3, s48'); e('v_add_u32 v8, v8, v5')
    for p in range(4):
        if p < 2: e('v_xor_b32 v6, v4, v3')
        else: e('v_or_b32 v7, 4, v3'); e('v_xor_b32 v6, v4, v7')
        e('v_lshl_add_u32 v6, v6, 5, v8')
        e('s_add_u32 s48, s47, %d' % (4*p*7168 - 1024*p)); e('v_add_u32 v%d, s48, v6' % (WV+p))
    e('s_lshl_b32 s44, s36, 12')
    e('s_mul_i32 s45, s36, 20480'); e('s_add_u32 s45, s45, %d' % XBASE)
    e('s_lshl_b32 s40, s39, 7')
    e('s_waitcnt lgkmcnt(0)')
    P += srd(16, 4, 2048*1024*2); P += srd(20, 6, 1024*3584*2, 58); P += srd(24, 6, 1024*3584*2, 59)
    def g1_loads(sg):
        slot = sg % NSLOT; g = []
        cur, nxt = (40, 3)[sg % 2], (3, 40)[sg % 2]
        g.append('s_add_u32 m0, s44, %d' % (slot*16384))
        g.append('s_mul_i32 s41, s%d, 3584' % cur)
        wsrd = 20 if sg < 16 else 24
        for p in range(4): g.append(vm('buffer_load_dwordx4 v%d, s[%d:%d], s41 offen offset:%d lds' % (WV+p, wsrd, wsrd+3, 1024*p), ('w', sg)))
        if sg < 16: g.append('s_add_u32 m0, s45, %d' % (slot*4096))
        g.append('s_add_u32 s%d, s%d, 128' % (nxt, cur))
        if sg < 16:
            for p in range(4): g.append(vm('buffer_load_dwordx4 v%d, s[16:19], s%d offen offset:%d lds' % (XV+p, cur, 1024*p), ('w', sg)))
        g.append('s_and_b32 s%d, s%d, 2047' % (nxt, nxt))
        return g
    P += g1_loads(0)
    if o.get('cpf', 1):
        e('s_getpc_b64 s[46:47]'); e('L_pf:'); e('v_min_u32 v1, 3, v0'); e('v_lshlrev_b32 v1, 7, v1'); e('s_lshr_b32 s48, s2, 3'); e('s_lshl_b32 s48, s48, 2'); e('s_add_u32 s48, s48, s36'); e('s_lshl_b32 s48, s48, 9')
        e('v_add_u32 v1, s48, v1'); e('s_mov_b32 s48, L_end-L_pf'); e('v_min_u32 v9, s48, v1'); e(vm('global_load_dword v2, v9, s[46:47]'))
    P += srd(32, 14, WS_BYTES); P += srd(28, 10, 2048*1024*2)
    e('s_lshl_b32 s46, s43, 8'); e('s_lshl_b32 s47, s42, 7'); e('s_add_u32 s48, s46, s47'); e('s_xor_b32 s47, s47, 128'); e('s_add_u32 s47, s46, s47')
    P += srd(92, 8, 3584*1024*2, 47); P += srd(96, 8, 3584*1024*2, 48); e('s_mov_b32 s39, s47')
    e('v_lshrrev_b32 v3, 4, v0')
    e('v_and_b32 v4, 15, v0'); e('v_lshlrev_b32 v4, 11, v4'); e('v_and_b32 v5, 1, v3'); e('v_lshl_add_u32 v4, v5, 5, v4'); e('v_lshrrev_b32 v5, 1, v3'); e('v_lshl_add_u32 v4, v5, 4, v4')
    e('s_lshl_b32 s46, s37, 2'); e('s_add_u32 s46, s46, s36'); e('s_lshl_b32 s47, s46, 16'); e('s_add_u32 s47, s47, s48'); e('v_add_u32 v%d, s47, v4' % OV)
    e('s_mul_i32 s46, s46, %d' % (112*2048)); e('v_lshlrev_b32 v4, 4, v0'); e('v_add_u32 v%d, s46, v4' % HV)
    e('s_lshl_b32 s46, s36, 13'); e('s_add_u32 s46, s46, %d' % XCH_OFF); e('v_add_u32 v%d, s46, v4' % XO)
    P += srd(4, 12, 256)
    e('s_lshl_b32 s46, s37, 1'); e('s_add_u32 s46, s46, s42'); e('s_lshl_b32 s46, s46, 7'); e('s_add_u32 s46, s46, %d' % FLG_OFF)
    e('s_cmp_eq_u32 s36, 0'); e('s_cselect_b32 s8, s46, %d' % OOB); e('s_add_u32 s9, s8, 4096'); e('s_add_u32 s10, s8, 8192'); e('s_xor_b32 s11, s10, 128')
    e('s_lshl_b32 s12, s2, 15'); e('s_xor_b32 s13, s12, 32768')
    e('s_add_u32 s14, s12, 4096'); e('s_add_u32 s15, s13, 4096')
    e('v_and_b32 v4, 7, v0'); e('v_lshlrev_b32 v%d, 2, v4' % PV)
    e('s_lshl_b32 s46, s55, 2'); e('v_mov_b32 v%d, s46' % PX); e('v_mov_b32 v4, %d' % OOB); e('v_cmp_eq_u32 vcc, 0, v0'); e('s_nop 1'); e('v_cndmask_b32 v%d, v4, v%d, vcc' % (FV, PX))
    e('s_mov_b32 s1, %d' % FLG_OFF); e('s_or_b32 s46, s2, s36'); e('s_cmp_eq_u32 s46, 0'); e('s_cselect_b32 s1, s1, %d' % OOB)
    e('v_lshrrev_b32 v4, 1, v0'); e('v_lshlrev_b32 v4, 7, v4'); e('v_and_b32 v5, 1, v0'); e('v_lshl_add_u32 v1, v5, 4, v4')
    for i in range(3):
        if i: e('s_add_u32 s1, s1, 4096')
        P.append(vm('buffer_load_dwordx4 v[%d:%d], v1, s[32:35], s1 offen sc1' % (RX+4*i, RX+4*i+3), ('scan', i)))
    P += g1_loads(1)
    e('v_lshrrev_b32 v3, 4, v0'); e('v_bfe_u32 v4, v0, 2, 2'); e('v_and_b32 v5, 3, v0')
    e('v_lshl_add_u32 v6, v3, 3, v4'); e('v_lshlrev_b32 v6, 8, v6'); e('v_lshl_add_u32 v6, v5, 3, v6')
    e('v_and_b32 v7, 1, v3'); e('v_lshl_add_u32 v7, v7, 2, v4')
    for t in range(8):
        e('v_xor_b32 v8, %d, v7' % t); e('v_lshl_add_u32 v%d, v8, 5, v6' % (TA1+t)); e('v_add_u32 v%d, 0x10000, v%d' % (TA1+8+t, TA1+t))
    e('s_lshl_b32 s46, s50, 1')
    for t in range(6):
        e('s_add_u32 s47, s46, %d' % t); e('v_xor_b32 v8, s47, v7'); e('v_lshl_add_u32 v%d, v8, 5, v6' % (TA2+t)); e('v_add_u32 v%d, 0x10000, v%d' % (TA2+6+t, TA2+t))
    e('v_lshl_add_u32 v6, v3, 2, v4'); e('v_bfe_u32 v7, v6, 1, 2'); e('v_lshlrev_b32 v6, 7, v6'); e('v_lshl_add_u32 v6, v5, 3, v6')
    for t in range(4):
        e('v_xor_b32 v8, %d, v7' % t); e('v_lshl_add_u32 v%d, v8, 5, v6' % (TA3+t)); e('v_add_u32 v%d, 0x10000, v%d' % (TA3+4+t, TA3+t)); e('v_add_u32 v%d, 0x20000, v%d' % (TA3+8+t, TA3+t))
    e('v_and_b32 v4, 15, v0'); e('v_lshrrev_b32 v5, 1, v4'); e('v_xor_b32 v5, v5, v3')
    e('v_lshlrev_b32 v4, 7, v4'); e('v_add_u32 v4, s45, v4')
    e('v_lshl_add_u32 v%d, v5, 4, v4' % XR); e('v_xor_b32 v5, 4, v5'); e('v_lshl_add_u32 v%d, v5, 4, v4' % (XR+1))
    e('v_lshrrev_b32 v3, 3, v0'); e('v_bfe_u32 v4, v0, 1, 2'); e('v_lshrrev_b32 v5, 1, v3'); e('v_xor_b32 v4, v4, v5')
    e('v_and_b32 v5, 1, v0'); e('v_lshlrev_b32 v5, 4, v5'); e('v_lshl_add_u32 v4, v4, 5, v5'); e('v_lshl_add_u32 v4, v3, 11, v4')
    e('s_lshl_b32 s46, s36, 15'); e('v_add_u32 v%d, s46, v4' % WV2); e('v_add_u32 v%d, %d, v%d' % (WV2+1, 8*2048 - 1024, WV2))
    e('s_lshl_b32 s62, s36, 11')
    e('s_mul_i32 s46, s38, 7'); e('s_mul_i32 s47, s50, 3'); e('s_add_u32 s47, s47, s46'); e('s_lshl_b32 s58, s47, 11'); e('s_add_u32 s59, s58, 4096')
    e('s_lshl_b32 s47, s50, 2'); e('s_sub_u32 s47, s46, s47'); e('s_add_u32 s47, s47, 4'); e('s_lshl_b32 s60, s47, 11'); e('s_add_u32 s61, s60, 4096')
    e('s_mov_b32 s56, 0x%x' % (LOG2E | 0x80000000)); e('s_mov_b32 s57, 32768')
    if o.get('norot2'): e('s_mov_b32 s55, 0')
    e('v_lshrrev_b32 v3, 1, v0'); e('v_add_u32 v3, s55, v3'); e('v_and_b32 v3, 7, v3')
    e('v_lshrrev_b32 v4, 1, v3'); e('v_mul_u32_u24 v4, 7, v4'); e('v_and_b32 v3, 1, v3'); e('v_mul_u32_u24 v3, 5, v3'); e('v_add_u32 v4, v4, v3'); e('s_lshr_b32 s46, s101, 1'); e('s_and_b32 s46, s46, %d' % o.get('ntrg', 1)); e('v_xor_b32 v3, s46, v0'); e('v_and_b32 v3, 1, v3'); e('v_add_u32 v4, v4, v3')
    e('v_subrev_u32 v3, 16, v0'); e('v_and_b32 v3, 63, v3'); e('v_mul_u32_u24 v5, 171, v3'); e('v_lshrrev_b32 v5, 9, v5')
    e('v_mul_u32_u24 v6, 3, v5'); e('v_sub_u32 v3, v3, v6'); e('s_and_b32 s46, s101, %d' % (3*o.get('ntrg', 1))); e('v_add_u32 v3, s46, v3'); e('v_mul_u32_u24 v6, 171, v3'); e('v_lshrrev_b32 v6, 9, v6'); e('v_mul_u32_u24 v6, 3, v6'); e('v_sub_u32 v3, v3, v6'); e('s_lshr_b32 s46, s55, 1'); e('v_add_u32 v5, s46, v5'); e('v_and_b32 v5, 3, v5')
    e('v_mul_u32_u24 v5, 7, v5'); e('v_add3_u32 v5, v5, v3, 2')
    e('v_cmp_gt_u32 vcc, 16, v0'); e('s_mul_i32 s46, s42, 28'); e('s_nop 0'); e('v_cndmask_b32 v4, v5, v4, vcc'); e('v_add_u32 v4, s46, v4'); e('v_lshlrev_b32 v4, 12, v4'); e('s_nop 0')
    for i in range(28): e('v_readlane_b32 s%d, v4, %d' % (S_TAB+i, i))
    e('v_mov_b32 v1, 0')
    TV = 245
    e('s_lshl_b32 s46, s2, 2'); e('s_add_u32 s46, s46, s36'); e('s_mul_i32 s46, s46, %d' % (56*128)); e('s_sub_u32 s46, s46, s39'); e('v_min_u32 v4, 55, v0'); e('v_lshlrev_b32 v4, 7, v4'); e('v_add_u32 v%d, s46, v4' % TV)
    e('s_lshr_b32 s39, s2, 3'); e('s_mul_i32 s46, s39, %d' % (65536 // max(1, o.get('nt', 6)) + 1)); e('s_lshr_b32 s46, s46, 16'); e('s_mul_i32 s46, s46, %d' % max(1, o.get('nt', 6))); e('s_sub_u32 s39, s39, s46')
    ops = []
    units = []
    for i in range(12): units += [(i, 0, 32+i), (i, 1, 32+i)]
    for i in range(12, 28): units.append((i, 0, 44 + (i-12)//2))
    for i in range(12, 28): units.append((i, 1, 52 + (i-12)//2))
    useq = list(range(10, 20)) + [4, 5, 6, 7, 8, 9, 0, 1, 2, 3]
    upos = {(i, h): useq[u % 20] for u, (i, h, s) in enumerate(units)}
    def acc(t, j): return ACC + (t*2+j)*4
    for ps, nt in ((0, 8), (1, 6)):
        for u in range(32):
            sg = ps*16 + u//2
            for t in range(nt):
                off = (sg % NSLOT)*16384 + (u % 2)*8192; areg = (TA1, TA2)[ps] + t
                if off >= 65536: areg += nt; off -= 65536
                ops.append(dict(seg=sg, areg=areg, off=off, d2=1024, tile=ps*8+t, b=u*8, first=(u == 0), u=u, ps=ps, t=t))
    def g2op(i, h, st, t, seg, first):
        off = upos[(i, h)]*8192 + st*4096
        ops.append(dict(seg=seg, areg=TA3 + 4*(off >> 16) + t, off=off & 0xffff, d2=2048, tile=h*4+t, b=((i % 16)*2+st)*8, first=first, ps=2))
    for i in range(12):
        for st in range(2):
            for h in range(2):
                for t in range(4): g2op(i, h, st, t, 32+i, i == 0 and st == 0)
    for h in range(2):
        for i in range(12, 28):
            for st in range(2):
                for t in range(4): g2op(i, h, st, t, (44, 52)[h] + (i-12)//2, False)
    NSEG = 60; R = 8; N = len(ops)
    def rd(n):
        q = ops[n]; f = AF + (n % R)*4
        return [lds('ds_read_b64_tr_b16 v[%d:%d], v%d offset:%d' % (f, f+1, q['areg'], q['off']), ('a', n, 0)),
                lds('ds_read_b64_tr_b16 v[%d:%d], v%d offset:%d' % (f+2, f+3, q['areg'], q['off']+q['d2']), ('a', n, 1))]
    def xrd(sg):
        r = []
        for st in range(2):
            for j in range(2):
                a = ((sg*2+st)*2+j)*4
                r.append(lds('ds_read_b128 a[%d:%d], v%d offset:%d' % (a, a+3, XR+st, (sg % NSLOT)*4096 + 2048*j), ('x', sg*2+st, j)))
        return r
    S = Sched2(); fm = {}
    for n, q in enumerate(ops):
        f = AF + (n % R)*4
        for j in range(2):
            a = acc(q['tile'], j); b = q['b'] + j*4
            c = '0' if q['first'] else 'v[%d:%d]' % (a, a+3)
            i = S.add('%s v[%d:%d], v[%d:%d], a[%d:%d], %s' % (MF, a, a+3, f, f+3, b, b+3, c))
            if j == 0: fm[n] = i
    bar_gap = {}; bar_wait = {}; bar_list = {}
    seg_first = {}
    for n in range(N): seg_first.setdefault(ops[n]['seg'], n)
    WE = o.get('we', 4); LAT = o.get('lat', 6)
    first_wait = None
    for n in range(0, N, WE):
        tags = [('a', n+WE-1, 1)]
        q = ops[n]
        if q['ps'] == 0 and q['t'] == 0: tags += [('x', q['u'], 0), ('x', q['u'], 1)]
        if n: S.back[fm[n]-1].append(W(lds=tags))
        else: first_wait = W(lds=tags)
    for m in range(R, N):
        g = fm[m-R] + 1
        if ops[m]['seg'] != ops[m-1]['seg']:
            sg = ops[m]['seg']
            bar_wait[sg] = W(vm=[]); bar_list[sg] = [bar_wait[sg], 's_barrier']
            S.front[g] = bar_list[sg]; bar_gap[sg] = g
        dl = fm[m - m % WE] - 1 - LAT
        for r in rd(m): S.item('a', r, g, max(g, dl), prio=0)
    bar_gap[0] = -1; bar_gap[NSEG] = len(S.mf)
    plan = []
    for sg in range(2, 32): plan.append([max(0, sg-3), sg, g1_loads(sg), ('w', sg)])
    P_F1SET, P_F1CHK = o.get('f1set', 27), o.get('f1chk', 30)
    P_F2SET, P_F2CHK = o.get('f2set', 38), o.get('f2chk', 42)
    P_XSET, P_XCHK = o.get('xset', 56), o.get('xchk', 59)
    for u, (i, h, seg) in enumerate(units):
        if u < 10: early = o.get('u0', 17)
        elif u < 20: early = 27 + (u-10)//2 + 2
        else: early = units[u-20][2] + 2
        g = ['s_add_u32 m0, s62, %d' % (upos[(i, h)]*8192), 's_lshl_b32 s63, s%d, 5' % (S_TAB+i)]
        for p in range(2): g.append(vm('buffer_load_dwordx4 v%d, s[%d:%d], s63 offen offset:%d lds' % (WV2+p, 92+4*h, 95+4*h, 1024*p), ('u', u)))
        plan.append([early, seg, g, ('u', u)])
    for i in range(28):
        seg = 32+i if i < 12 else 44 + (i-12)//2
        early = max(16 + i + 2, P_F1CHK) if i < 16 else max(32 + (i-16) + 2, P_F2CHK)
        g = [vm('buffer_load_dwordx4 a[%d:%d], v%d, s[32:35], s%d offen offset:%d sc1' % (((i % 16)*4+k)*4, ((i % 16)*4+k)*4+3, HV, S_TAB+i, 1024*k), ('h', i)) for k in range(4)]
        plan.append([early, seg, g, ('h', i)])
    plan.sort(key=lambda x: (x[1], x[0]))
    def budget(p):
        if p < 2: return o.get('b0', 16)
        if p < 16: return 8
        if p < 32: return o.get('bp2', 6)
        if p < 44: return o.get('ba', 9)
        if p < 52: return o.get('bb', 10)
        return o.get('bc', 6)
    LEAD = o.get('lead', 2)
    per = {p: [] for p in range(NSEG)}
    todo = list(plan)
    for p in range(NSEG):
        used = 0; rest = []
        for it in todo:
            nv = sum(1 for x in it[2] if isinstance(x, I))
            if it[0] <= p and (used + nv <= budget(p) or it[1] - LEAD <= p):
                per[p].append(it); used += nv
            else: rest.append(it)
        todo = rest
    assert not todo
    for p in range(NSEG):
        for it in per[p]:
            assert p < it[1], (p, it[3])
            bar_wait[it[1]].vm.append(it[3])
    bar_wait[1].vm.append(('w', 1))
    if o.get('plan'):
        for p in range(NSEG): print(p, [it[3] for it in per[p]], file=sys.stderr)
    slow = []
    def check(lbl, tag, reload):
        nonlocal slow
        slow += [lbl + '_slow:', 's_mov_b32 s46, %d' % SPIN, lbl + '_spin:', reload, 's_waitcnt vmcnt(0)', 's_sub_u32 s46, s46, 1', 's_cmp_eq_u32 s46, 0', 's_cbranch_scc1 %s_ok' % lbl,
                 'v_cmp_ne_u32 vcc, s54, v%d' % PR, 's_nop 1', 's_cbranch_vccnz %s_spin' % lbl] + (['s_sub_u32 s46, %d, s46' % SPIN, 'v_writelane_b32 v%d, s46, %d' % (STV, 61 + len(slow)//14)] if ST else []) + ['s_branch %s_ok' % lbl]
        return [W(vm=[tag]), 'v_cmp_ne_u32 vcc, s54, v%d' % PR, 's_nop 1', 's_cbranch_vccnz %s_slow' % lbl, lbl + '_ok:']
    extra = {p: [] for p in range(NSEG)}
    PL = o.get('plag', 2)
    for lbl, pset, pchk, sset, schk, vchk in (('L_f1', P_F1SET, P_F1CHK, 8, 8, PV), ('L_f2', P_F2SET, P_F2CHK, 9, 9, PV), ('L_fx', P_XSET, P_XCHK, 10, 11, PX)):
        extra[pset].append(vm('buffer_store_dword v%d, v%d, s[32:35], s%d offen sc1' % (NON, FV, sset)))
        ld = 'buffer_load_dword v%d, v%d, s[32:35], s%d offen sc1' % (PR, vchk, schk)
        pl = 1 if lbl == 'L_fx' else PL
        extra[pchk-pl].append(vm(ld, lbl))
        bar_list[pchk][0:0] = check(lbl, lbl, ld)
    mk = [W(vm=[('scan', 2)]), 's_cmp_ge_u32 s1, %d' % OOB, 's_cbranch_scc1 L_mk_done', 'v_readfirstlane_b32 s46, v%d' % RX, 'L_mk:', 's_add_u32 s46, s46, 1', 's_cmp_eq_u32 s46, 0', 's_cbranch_scc1 L_mk']
    for i in range(12): mk += ['v_cmp_eq_u32 vcc, s46, v%d' % (RX+i), 's_nop 1', 's_cbranch_vccnz L_mk']
    mk += ['v_mov_b32 v%d, s46' % NON, 'L_mk_done:', 's_sub_u32 s1, s1, %d' % (FLG_OFF + 8192)]
    bar_list[2] += mk
    extra[2].append(vm('buffer_store_dword v%d, v%d, s[4:7], s1 offen sc1' % (NON, FV)))
    PN = o.get('pn', 11)
    e2 = 'buffer_load_dword v%d, v1, s[4:7], 0 offen sc1' % PR
    extra[PN].append(vm(e2, 'non'))
    slow += ['L_n_slow:', 's_mov_b32 s46, %d' % SPIN, 'L_n_spin:', e2, 's_waitcnt vmcnt(0)', 'v_readfirstlane_b32 s54, v%d' % PR, 's_sub_u32 s46, s46, 1', 's_cmp_eq_u32 s46, 0', 's_cbranch_scc1 L_n_ok',
             's_cmp_eq_u32 s54, 0', 's_cbranch_scc1 L_n_spin', 's_branch L_n_ok']
    bar_list[PN+3] += [W(vm=['non']), 'v_readfirstlane_b32 s54, v%d' % PR, 's_nop 0', 's_cmp_eq_u32 s54, 0', 's_cbranch_scc1 L_n_slow', 'L_n_ok:', 'v_mov_b32 v%d, s54' % NON, 's_cmp_eq_u32 s36, 0', 's_cselect_b32 s54, s54, 0']
    if o.get('fine'):
        for sg in range(1, NSEG):
            S.back[bar_gap[sg]-1][0:0] = ['v_writelane_b32 v251, s52, %d' % (sg-1), 'v_writelane_b32 v252, s50, %d' % (sg-1)]; bar_list[sg] += ['s_memtime s[52:53]', 's_memrealtime s[50:51]']
    if o.get('touch', 1):
        for k in range(o.get('nt', 6)):
            p = o.get('t0', 14) + k
            extra[p].append(['s_cmp_eq_u32 s39, %d' % k, 's_cbranch_scc1 L_t%d' % k, 'L_t%d_ok:' % k])
            slow += ['L_t%d:' % k, 'buffer_load_dword v2, v%d, s[92:95], 0 offen' % TV, 's_branch L_t%d_ok' % k]
    def mkstore(sreg, c, tag):
        return lambda j, ob: vm('buffer_store_dwordx4 v[%d:%d], v%d, s[32:35], s%d offen offset:%d sc1' % (ob, ob+3, HV, sreg + c//2, (c % 2)*2048 + j*1024), tag)
    epi1 = []; epi2 = []
    for c in range(4): epi1 += silu_chunk(acc, 2*c, lambda j, c=c: OB + ((c % 2)*2+j)*4, TMP + (c % 2)*4, mkstore(58, c, 'hs1'))
    for c in range(3): epi2 += silu_chunk(acc, 8+2*c, lambda j, c=c: OB + ((c % 2)*2+j)*4, TMP + (c % 2)*4, mkstore(60, c, 'hs2'))
    xst = [vm('buffer_store_dwordx4 v[%d:%d], v%d, s[32:35], s%d offen offset:%d sc1' % (ACC+4*i, ACC+4*i+3, XO, 12 + 2*(i//4), 1024*(i % 4)), 'xs') for i in range(8)]
    xld = [vm('buffer_load_dwordx4 v[%d:%d], v%d, s[32:35], s%d offen offset:%d sc1' % (RX+4*i, RX+4*i+3, XO, 13 + 2*(i//4), 1024*(i % 4)), 'xl') for i in range(8)]
    SEP = o.get('sep', 2)
    def isv(x): return isinstance(x, I) and x.kind == 'vm'
    def spread(chain, L, g0, g1, prio, dl=None, sep=None, slack=3, vonly=False):
        w_ = (lambda x: 1 if isv(x) else 0) if vonly else wt
        tot = max(1, sum(w_(x) for x in L)); acc_ = 0; its = []
        for x in L:
            tgt = g0 + int(acc_ * (g1 - g0) / tot)
            if vonly and not isv(x): tgt = max(g0, tgt - 2)
            its.append(S.item(chain, x, g0, min((g1 if dl is None else dl) - 1, tgt + slack), tgt, prio=prio, sep=(SEP if sep is None else sep) if isv(x) else 0, hard=(g1 if dl is None else dl) - 1)); acc_ += w_(x)
        return its
    for p in range(NSEG):
        g0, g1 = max(bar_gap[p], 0), bar_gap[p+1]
        for k, x in enumerate(extra[p]): S.item(('ex', p, k), x, g0, g0+6, prio=1)
        if 1 <= p < 16:
            xr = xrd(p)
            for k, x in enumerate(xr): S.item('x', x, g0, fm[seg_first[p] + 8*(k//2)] - 1 - LAT, prio=1)
        L = []
        for it in per[p]: L += it[2]
        if p == P_XCHK: spread('xl', xld, g0, g0+8, 1, dl=g0+24, sep=1)
        if L: spread('v', L, g0 + 1, g1, 2, dl=g1, vonly=True, slack=o.get('vslack', 3))
    p2s, As, Cs = fm[seg_first[16]], fm[seg_first[32]], fm[seg_first[52]]
    def epi(chain, L, g0, cap, span, lim):
        for g in range(g0, g0 + span): S.cap[g] = max(S.cap[g], cap)
        return spread(chain, L, g0, g0 + span, 3, dl=lim, sep=0, slack=o.get('eslack', 2))
    e1 = epi('e1', epi1, p2s + 1, o.get('e1cap', 4), o.get('e1span', 192), bar_gap[o.get('f1dl', P_F1SET-2)])
    e2_ = epi('e2', epi2, As + 5, o.get('e2cap', 5), o.get('e2span', 128), bar_gap[o.get('f2dl', P_F2SET-1)])
    xs_ = spread('xs', xst, Cs + 5, Cs + 5 + o.get('xspan', 32), 1, dl=bar_gap[P_XSET-1], sep=o.get('xsep', 4))
    bar_wait[P_F1SET].vm.append('hs1'); bar_wait[P_F2SET].vm.append('hs2'); bar_wait[P_XSET].vm.append('xs')
    S.run()
    if o.get('gaps'): print('epi1 ends gap', e1[-1]['gap'], 'lim', bar_gap[P_F1SET], 'epi2 ends', e2_[-1]['gap'], bar_gap[P_F2SET], 'xs ends', xs_[-1]['gap'], file=sys.stderr)
    for w in bar_wait.values():
        if not w.vm: w.vm = None
    P.append(W(vm=('w', 0))); e('s_barrier')
    P += stamp()
    if o.get('fine'): e('s_memtime s[52:53]'); e('s_memrealtime s[50:51]')
    P += xrd(0)
    for n in range(R): P += rd(n)
    P.append(first_wait)
    body = S.emit()
    if ST:
        marks = [seg_first[s] for s in o.get('stseg', (4, 8, 16, 24, 32, 38, 44, 48, 52, 56))] if not o.get('fine') else []
        sts = [stamp() for _ in marks]
        for n, st_ in reversed(list(zip(marks, sts))):
            k = next(i for i, x in enumerate(body) if x is S.mf[fm[n]])
            body[k:k] = st_
    P += [x for x in body if not (isinstance(x, W) and x.vm is None and x.lds is None)]
    if o.get('fine'): e('v_writelane_b32 v251, s52, 59'); e('v_writelane_b32 v252, s50, 59')
    if o.get('gaps'):
        for p in range(NSEG):
            g0, g1 = bar_gap[p], bar_gap[p+1]
            ld = [S.load(g) for g in range(max(g0, 0), min(g1, len(S.mf)))]
            print(p, len(ld), 'sum', sum(ld), 'over2', sum(max(0, x-2) for x in ld), ''.join(str(min(x, 9)) for x in ld), file=sys.stderr)
    P += stamp()
    P.append(W(vm=['xl'])); e('s_nop 6')
    P += stamp()
    k = 0
    for j in range(2):
        for u in range(2):
            ob = OB + (k % 2)*4; k += 1
            for tt in range(2):
                a = acc(4+2*u+tt, j); r = RX + ((2*u+tt)*2+j)*4
                for i in range(4): e('v_add_f32 v%d, v%d, v%d' % (a+i, a+i, r+i))
                e('v_cvt_pk_bf16_f32 v%d, v%d, v%d' % (ob+2*tt, a, a+1)); e('v_cvt_pk_bf16_f32 v%d, v%d, v%d' % (ob+2*tt+1, a+2, a+3))
            e('s_nop 1')
            e('v_permlane16_swap_b32 v%d, v%d' % (ob, ob+2)); e('v_permlane16_swap_b32 v%d, v%d' % (ob+1, ob+3))
            P.append(vm('buffer_store_dwordx4 v[%d:%d], v%d, s[28:31], %s offen offset:%d' % (ob, ob+3, OV, 's57' if j else '0', 64*u)))
    if ST:
        P += stamp(); e('s_waitcnt vmcnt(0)'); P += stamp()
        if o.get('dbgout') is not None:
            e('v_readlane_b32 s46, v%d, 0' % STV); e('v_lshlrev_b32 v3, 1, v0'); e('v_and_b32 v4, 1, v0'); e('v_lshl_add_u32 v3, v4, 12, v3'); e('v_subrev_u32 v5, s46, v%d' % STV)
            e('v_cmp_eq_u32 vcc, 0, v0'); e('v_mov_b32 v4, 4096'); e('s_nop 0'); e('v_cndmask_b32 v3, v3, v4, vcc')
            e('s_lshl_b32 s46, s2, 2'); e('s_add_u32 s46, s46, s36'); e('s_cmp_eq_u32 s46, %d' % (4*o['dbgout'])); e('s_cselect_b32 s46, 0, 4096')
            e('buffer_store_dword v5, v3, s[4:7], s46 offen')
        e('s_mov_b32 s34, 0x10000000')
        e('s_lshl_b32 s46, s2, 2'); e('s_add_u32 s46, s46, s36'); e('s_lshl_b32 s46, s46, 8'); e('s_add_u32 s46, s46, %d' % STAMP_OFF)
        e('v_lshlrev_b32 v1, 2, v0'); e('buffer_store_dword v%d, v1, s[32:35], s46 offen' % STV)
        e('s_add_u32 s46, s46, 0x100000'); e('buffer_store_dword v251, v1, s[32:35], s46 offen'); e('s_add_u32 s46, s46, 0x100000'); e('buffer_store_dword v252, v1, s[32:35], s46 offen'); e('s_waitcnt vmcnt(0)')
    e('L_end:'); e('s_endpgm')
    P += slow
    L = fix_m0(resolve(P))
    for m in check_hazards(L): print('HAZARD', m, file=sys.stderr)
    kd = ['.amdhsa_kernel %s' % NAME, '  .amdhsa_next_free_vgpr 512', '  .amdhsa_next_free_sgpr 102', '  .amdhsa_accum_offset 256',
          '  .amdhsa_group_segment_fixed_size 0', '  .amdhsa_kernarg_size 48', '  .amdhsa_user_sgpr_count 2',
          '  .amdhsa_user_sgpr_kernarg_segment_ptr 1', '  .amdhsa_system_sgpr_workgroup_id_x 1', '  .amdhsa_float_denorm_mode_32 3', '.end_amdhsa_kernel']
    s = HDR + '; @launch grid=(256,1,1) block=(256,1,1) lds=163840\n.amdgcn_target "amdgcn-amd-amdhsa--gfx950"\n.text\n'
    s += '\n'.join(L) + '\n.section .rodata,"a"\n.p2align 6\n' + '\n'.join(kd) + '\n'
    if ST: print('stamps:', nst[0], file=sys.stderr)
    return s

def opts(args):
    o = {}
    for a in args:
        k, v = a.split('=')
        try: v = float(v) if '.' in v else int(v)
        except ValueError: pass
        o[k] = v
    return o
if __name__ == '__main__':
    open(sys.argv[1], 'w').write(gen(opts(sys.argv[2:])))
```

```python
import sys
from asmlib import *

HDR = open('standalone__dense_activation_silu__prompt.s.ref').read().split('; Override launch')[0]
NAME = 'standalone__dense_activation_silu__prompt_kernel'
MF = 'v_mfma_f32_16x16x32_bf16'
LOG2E = 0x3fb8aa3b
WS_BYTES = 0x2000000
XCH_OFF = 0x1000000
FLG_OFF = 0x1800000
STAMP_OFF = 0xF000000
OOB = 0x7000000
ACC, AF, TA1, TA2, XV, WV, XR, HV, TMP, OB = 16, 128, 160, 176, 188, 192, 196, 198, 200, 208
TA3, WV2, OV, XO, NON, PV, PR, FV, PX, SC = 224, 236, 238, 239, 240, 241, 242, 243, 244, 4
RX = 80
STV = 250
S_TAB = 64

def srd(d, ptr, nbytes, add=None):
    o = []
    if add is None:
        o += ['s_mov_b32 s%d, s%d' % (d, ptr), 's_and_b32 s%d, s%d, 0xffff' % (d+1, ptr+1), 's_mov_b32 s%d, %d' % (d+2, nbytes)]
    else:
        o += ['s_add_u32 s%d, s%d, s%d' % (d, ptr, add), 's_addc_u32 s%d, s%d, 0' % (d+1, ptr+1), 's_and_b32 s%d, s%d, 0xffff' % (d+1, d+1),
              's_sub_u32 s%d, %d, s%d' % (d+2, nbytes, add)]
    o.append('s_mov_b32 s%d, 0x20000' % (d+3))
    return o

def fix_m0(lines):
    out = []
    for ln in lines:
        if out and ' lds' in ln and ln.startswith('buffer_load') and ' m0,' in out[-1]: out.append('s_nop 0')
        out.append(ln)
    return out

def silu_chunk(acc_tile, c_t0, outbuf, T, store):
    it = []
    for j in range(2):
        ob = outbuf(j)
        for tt in range(2):
            a = acc_tile(c_t0 + tt, j)
            for i in range(4): it.append('v_mul_f32 v%d, s56, v%d' % (T+i, a+i))
            for i in range(4): it.append(tr('v_exp_f32 v%d, v%d' % (T+i, T+i)))
            for i in range(4): it.append('v_add_f32 v%d, 1.0, v%d' % (T+i, T+i))
            for i in range(4): it.append(tr('v_rcp_f32 v%d, v%d' % (T+i, T+i)))
            for i in range(4): it.append('v_mul_f32 v%d, v%d, v%d' % (T+i, T+i, a+i))
            it.append('v_cvt_pk_bf16_f32 v%d, v%d, v%d' % (ob+2*tt, T, T+1))
            it.append('v_cvt_pk_bf16_f32 v%d, v%d, v%d' % (ob+2*tt+1, T+2, T+3))
        it.append(store(j, ob))
    return it

def gen(o):
    P = []; e = P.append
    ST = o.get('stamps')
    nst = [0]
    def stamp():
        if not ST: return []
        k = nst[0]; nst[0] += 1
        return ['s_memrealtime s[52:53]', 's_waitcnt lgkmcnt(0)', 'v_writelane_b32 v%d, s52, %d' % (STV, 2*k), 's_memtime s[52:53]', 's_waitcnt lgkmcnt(0)', 'v_writelane_b32 v%d, s52, %d' % (STV, 2*k+1)]
    NSLOT = 5; XBASE = 81920
    SPIN = o.get('spin', 200000)
    e('.globl %s' % NAME); e('.p2align 8'); e('.type %s,@function' % NAME); e(NAME + ':')
    e('s_cmp_ge_u32 s2, 256'); e('s_cbranch_scc1 L_end')
    e('s_load_dwordx4 s[4:7], s[0:1], 0'); e('s_load_dwordx4 s[8:11], s[0:1], 16'); e('s_load_dwordx4 s[12:15], s[0:1], 32')
    if ST: e('v_mov_b32 v%d, 0' % STV)
    if o.get('padto'): e('s_memrealtime s[100:101]'); e('s_waitcnt lgkmcnt(0)'); e('v_mov_b32 v253, s100')
    P += stamp()
    e('v_lshrrev_b32 v1, 6, v0'); e('s_and_b32 s46, s2, 7'); e('v_readfirstlane_b32 s36, v1'); e('s_lshr_b32 s47, s2, 3')
    e('s_lshr_b32 s51, s46, 1'); e('s_lshl_b32 s37, s51, 2'); e('s_lshr_b32 s48, s47, 3'); e('s_add_u32 s37, s37, s48')
    e('s_and_b32 s42, s46, 1'); e('s_lshl_b32 s38, s42, 3'); e('s_and_b32 s49, s47, 7'); e('s_add_u32 s38, s38, s49')
    e('s_lshl_b32 s43, s48, 1'); e('s_add_u32 s43, s43, s49'); e('s_and_b32 s52, s51, %d' % o.get('ntrg', 1)); e('s_add_u32 s43, s43, s52'); e('s_and_b32 s43, s43, 7')
    e('v_and_b32 v0, 63, v0')
    rm = o.get('rot', 2)
    if rm == 0: e('s_mov_b32 s39, 0')
    elif rm == 1:
        e('s_lshl_b32 s39, s49, 1'); e('s_lshl_b32 s52, s48, 2'); e('s_add_u32 s39, s39, s52'); e('s_add_u32 s39, s39, s51'); e('s_and_b32 s39, s39, 15')
    elif rm == 2:
        e('s_add_u32 s39, s49, s48'); e('s_and_b32 s39, s39, 1'); e('s_lshl_b32 s39, s39, 2'); e('s_add_u32 s39, s39, s51'); e('s_lshl_b32 s52, s42, 1'); e('s_add_u32 s39, s39, s52'); e('s_lshl_b32 s39, s39, 1'); e('s_and_b32 s39, s39, 15')
    elif rm == 3:
        e('s_add_u32 s39, s49, s48'); e('s_and_b32 s39, s39, 3'); e('s_lshl_b32 s39, s39, 2'); e('s_add_u32 s39, s39, s51'); e('s_lshl_b32 s52, s42, 1'); e('s_add_u32 s39, s39, s52'); e('s_and_b32 s39, s39, 15')
    elif rm == 4:
        e('s_lshl_b32 s39, s42, 1'); e('s_add_u32 s39, s39, s51'); e('s_lshl_b32 s39, s39, 2'); e('s_and_b32 s39, s39, 15')
    e('s_mov_b32 s101, s51')
    e('s_mov_b32 s55, s49')
    e('s_and_b32 s50, s38, 1'); e('s_mul_i32 s51, s38, 448'); e('s_lshl_b32 s52, s50, 6'); e('s_sub_u32 s51, s51, s52')
    e('s_lshl_b32 s52, s50, 8'); e('s_add_u32 s58, s51, s52'); e('s_sub_u32 s59, s51, s52'); e('s_add_u32 s59, s59, 256')
    e('v_lshrrev_b32 v3, 3, v0'); e('v_and_b32 v4, 7, v0')
    e('s_lshl_b32 s46, s37, 2'); e('s_add_u32 s46, s46, s36'); e('s_lshl_b32 s47, s46, 16')
    e('v_lshrrev_b32 v5, 1, v3')
    for p in range(4):
        if p % 2 == 0: e('v_xor_b32 v6, v4, v5')
        else: e('v_or_b32 v7, 4, v5'); e('v_xor_b32 v6, v4, v7')
        e('v_lshlrev_b32 v6, 4, v6'); e('v_lshl_add_u32 v6, v3, 11, v6')
        e('s_add_u32 s48, s47, %d' % (8*p*2048 - 1024*p)); e('v_add_u32 v%d, s48, v6' % (XV+p))
    e('v_lshrrev_b32 v3, 4, v0'); e('v_bfe_u32 v4, v0, 1, 3'); e('v_and_b32 v5, 1, v0'); e('v_lshlrev_b32 v5, 4, v5')
    e('s_mul_i32 s47, s36, %d' % (16*7168)); e('s_movk_i32 s48, 7168'); e('v_mul_lo_u32 v8, v3, s48'); e('v_add_u32 v8, v8, v5')
    for p in range(4):
        if p < 2: e('v_xor_b32 v6, v4, v3')
        else: e('v_or_b32 v7, 4, v3'); e('v_xor_b32 v6, v4, v7')
        e('v_lshl_add_u32 v6, v6, 5, v8')
        e('s_add_u32 s48, s47, %d' % (4*p*7168 - 1024*p)); e('v_add_u32 v%d, s48, v6' % (WV+p))
    e('s_lshl_b32 s44, s36, 12')
    e('s_mul_i32 s45, s36, 20480'); e('s_add_u32 s45, s45, %d' % XBASE)
    e('s_lshl_b32 s40, s39, 7')
    e('s_waitcnt lgkmcnt(0)')
    P += srd(16, 4, 2048*1024*2); P += srd(20, 6, 1024*3584*2, 58); P += srd(24, 6, 1024*3584*2, 59)
    def g1_loads(sg):
        slot = sg % NSLOT; g = []
        cur, nxt = (40, 3)[sg % 2], (3, 40)[sg % 2]
        g.append('s_add_u32 m0, s44, %d' % (slot*16384))
        g.append('s_mul_i32 s41, s%d, 3584' % cur)
        wsrd = 20 if sg < 16 else 24
        for p in range(4): g.append(vm('buffer_load_dwordx4 v%d, s[%d:%d], s41 offen offset:%d lds' % (WV+p, wsrd, wsrd+3, 1024*p), ('w', sg)))
        if sg < 16: g.append('s_add_u32 m0, s45, %d' % (slot*4096))
        g.append('s_add_u32 s%d, s%d, 128' % (nxt, cur))
        if sg < 16:
            for p in range(4): g.append(vm('buffer_load_dwordx4 v%d, s[16:19], s%d offen offset:%d lds' % (XV+p, cur, 1024*p), ('w', sg)))
        g.append('s_and_b32 s%d, s%d, 2047' % (nxt, nxt))
        return g
    P += g1_loads(0)
    if o.get('cpf', 1):
        e('s_getpc_b64 s[46:47]'); e('L_pf:'); e('v_min_u32 v1, 3, v0'); e('v_lshlrev_b32 v1, 7, v1'); e('s_lshr_b32 s48, s2, 3'); e('s_lshl_b32 s48, s48, 2'); e('s_add_u32 s48, s48, s36'); e('s_lshl_b32 s48, s48, 9')
        e('v_add_u32 v1, s48, v1'); e('s_mov_b32 s48, L_end-L_pf'); e('v_min_u32 v9, s48, v1'); e(vm('global_load_dword v2, v9, s[46:47]'))
    P += srd(32, 14, WS_BYTES); P += srd(28, 10, 2048*1024*2)
    e('s_lshl_b32 s46, s43, 8'); e('s_lshl_b32 s47, s42, 7'); e('s_add_u32 s48, s46, s47'); e('s_xor_b32 s47, s47, 128'); e('s_add_u32 s47, s46, s47')
    P += srd(92, 8, 3584*1024*2, 47); P += srd(96, 8, 3584*1024*2, 48); e('s_mov_b32 s39, s47')
    e('v_lshrrev_b32 v3, 4, v0')
    e('v_and_b32 v4, 15, v0'); e('v_lshlrev_b32 v4, 11, v4'); e('v_and_b32 v5, 1, v3'); e('v_lshl_add_u32 v4, v5, 5, v4'); e('v_lshrrev_b32 v5, 1, v3'); e('v_lshl_add_u32 v4, v5, 4, v4')
    e('s_lshl_b32 s46, s37, 2'); e('s_add_u32 s46, s46, s36'); e('s_lshl_b32 s47, s46, 16'); e('s_add_u32 s47, s47, s48'); e('v_add_u32 v%d, s47, v4' % OV)
    e('s_mul_i32 s46, s46, %d' % (112*2048)); e('v_lshlrev_b32 v4, 4, v0'); e('v_add_u32 v%d, s46, v4' % HV)
    e('s_lshl_b32 s46, s36, 13'); e('s_add_u32 s46, s46, %d' % XCH_OFF); e('v_add_u32 v%d, s46, v4' % XO)
    P += srd(4, 12, 256)
    e('s_lshl_b32 s46, s37, 1'); e('s_add_u32 s46, s46, s42'); e('s_lshl_b32 s46, s46, 7'); e('s_add_u32 s46, s46, %d' % FLG_OFF)
    e('s_cmp_eq_u32 s36, 0'); e('s_cselect_b32 s8, s46, %d' % OOB); e('s_add_u32 s9, s8, 4096'); e('s_add_u32 s10, s8, 8192'); e('s_xor_b32 s11, s10, 128')
    e('s_lshl_b32 s12, s2, 15'); e('s_xor_b32 s13, s12, 32768')
    e('s_add_u32 s14, s12, 4096'); e('s_add_u32 s15, s13, 4096')
    e('v_and_b32 v4, 7, v0'); e('v_lshlrev_b32 v%d, 2, v4' % PV)
    e('s_lshl_b32 s46, s55, 2'); e('v_mov_b32 v%d, s46' % PX); e('v_mov_b32 v4, %d' % OOB); e('v_cmp_eq_u32 vcc, 0, v0'); e('s_nop 1'); e('v_cndmask_b32 v%d, v4, v%d, vcc' % (FV, PX))
    e('s_mov_b32 s1, %d' % FLG_OFF); e('s_or_b32 s46, s2, s36'); e('s_cmp_eq_u32 s46, 0'); e('s_cselect_b32 s1, s1, %d' % OOB)
    e('v_lshrrev_b32 v4, 1, v0'); e('v_lshlrev_b32 v4, 7, v4'); e('v_and_b32 v5, 1, v0'); e('v_lshl_add_u32 v1, v5, 4, v4')
    for i in range(3):
        if i: e('s_add_u32 s1, s1, 4096')
        P.append(vm('buffer_load_dwordx4 v[%d:%d], v1, s[32:35], s1 offen sc1' % (RX+4*i, RX+4*i+3), ('scan', i)))
    P += g1_loads(1)
    e('v_lshrrev_b32 v3, 4, v0'); e('v_bfe_u32 v4, v0, 2, 2'); e('v_and_b32 v5, 3, v0')
    e('v_lshl_add_u32 v6, v3, 3, v4'); e('v_lshlrev_b32 v6, 8, v6'); e('v_lshl_add_u32 v6, v5, 3, v6')
    e('v_and_b32 v7, 1, v3'); e('v_lshl_add_u32 v7, v7, 2, v4')
    for t in range(8):
        e('v_xor_b32 v8, %d, v7' % t); e('v_lshl_add_u32 v%d, v8, 5, v6' % (TA1+t)); e('v_add_u32 v%d, 0x10000, v%d' % (TA1+8+t, TA1+t))
    e('s_lshl_b32 s46, s50, 1')
    for t in range(6):
        e('s_add_u32 s47, s46, %d' % t); e('v_xor_b32 v8, s47, v7'); e('v_lshl_add_u32 v%d, v8, 5, v6' % (TA2+t)); e('v_add_u32 v%d, 0x10000, v%d' % (TA2+6+t, TA2+t))
    e('v_lshl_add_u32 v6, v3, 2, v4'); e('v_bfe_u32 v7, v6, 1, 2'); e('v_lshlrev_b32 v6, 7, v6'); e('v_lshl_add_u32 v6, v5, 3, v6')
    for t in range(4):
        e('v_xor_b32 v8, %d, v7' % t); e('v_lshl_add_u32 v%d, v8, 5, v6' % (TA3+t)); e('v_add_u32 v%d, 0x10000, v%d' % (TA3+4+t, TA3+t)); e('v_add_u32 v%d, 0x20000, v%d' % (TA3+8+t, TA3+t))
    e('v_and_b32 v4, 15, v0'); e('v_lshrrev_b32 v5, 1, v4'); e('v_xor_b32 v5, v5, v3')
    e('v_lshlrev_b32 v4, 7, v4'); e('v_add_u32 v4, s45, v4')
    e('v_lshl_add_u32 v%d, v5, 4, v4' % XR); e('v_xor_b32 v5, 4, v5'); e('v_lshl_add_u32 v%d, v5, 4, v4' % (XR+1))
    e('v_lshrrev_b32 v3, 3, v0'); e('v_bfe_u32 v4, v0, 1, 2'); e('v_lshrrev_b32 v5, 1, v3'); e('v_xor_b32 v4, v4, v5')
    e('v_and_b32 v5, 1, v0'); e('v_lshlrev_b32 v5, 4, v5'); e('v_lshl_add_u32 v4, v4, 5, v5'); e('v_lshl_add_u32 v4, v3, 11, v4')
    e('s_lshl_b32 s46, s36, 15'); e('v_add_u32 v%d, s46, v4' % WV2); e('v_add_u32 v%d, %d, v%d' % (WV2+1, 8*2048 - 1024, WV2))
    e('s_lshl_b32 s62, s36, 11')
    e('s_mul_i32 s46, s38, 7'); e('s_mul_i32 s47, s50, 3'); e('s_add_u32 s47, s47, s46'); e('s_lshl_b32 s58, s47, 11'); e('s_add_u32 s59, s58, 4096')
    e('s_lshl_b32 s47, s50, 2'); e('s_sub_u32 s47, s46, s47'); e('s_add_u32 s47, s47, 4'); e('s_lshl_b32 s60, s47, 11'); e('s_add_u32 s61, s60, 4096')
    e('s_mov_b32 s56, 0x%x' % (LOG2E | 0x80000000)); e('s_mov_b32 s57, 32768')
    if o.get('norot2'): e('s_mov_b32 s55, 0')
    e('v_lshrrev_b32 v3, 1, v0'); e('v_add_u32 v3, s55, v3'); e('v_and_b32 v3, 7, v3')
    e('v_lshrrev_b32 v4, 1, v3'); e('v_mul_u32_u24 v4, 7, v4'); e('v_and_b32 v3, 1, v3'); e('v_mul_u32_u24 v3, 5, v3'); e('v_add_u32 v4, v4, v3'); e('s_lshr_b32 s46, s101, 1'); e('s_and_b32 s46, s46, %d' % o.get('ntrg', 1)); e('v_xor_b32 v3, s46, v0'); e('v_and_b32 v3, 1, v3'); e('v_add_u32 v4, v4, v3')
    e('v_subrev_u32 v3, 16, v0'); e('v_and_b32 v3, 63, v3'); e('v_mul_u32_u24 v5, 171, v3'); e('v_lshrrev_b32 v5, 9, v5')
    e('v_mul_u32_u24 v6, 3, v5'); e('v_sub_u32 v3, v3, v6'); e('s_and_b32 s46, s101, %d' % (3*o.get('ntrg', 1))); e('v_add_u32 v3, s46, v3'); e('v_mul_u32_u24 v6, 171, v3'); e('v_lshrrev_b32 v6, 9, v6'); e('v_mul_u32_u24 v6, 3, v6'); e('v_sub_u32 v3, v3, v6'); e('s_lshr_b32 s46, s55, 1'); e('v_add_u32 v5, s46, v5'); e('v_and_b32 v5, 3, v5')
    e('v_mul_u32_u24 v5, 7, v5'); e('v_add3_u32 v5, v5, v3, 2')
    e('v_cmp_gt_u32 vcc, 16, v0'); e('s_mul_i32 s46, s42, 28'); e('s_nop 0'); e('v_cndmask_b32 v4, v5, v4, vcc'); e('v_add_u32 v4, s46, v4'); e('v_lshlrev_b32 v4, 12, v4'); e('s_nop 0')
    for i in range(28): e('v_readlane_b32 s%d, v4, %d' % (S_TAB+i, i))
    e('v_mov_b32 v1, 0')
    TV = 245
    e('s_lshl_b32 s46, s2, 2'); e('s_add_u32 s46, s46, s36'); e('s_mul_i32 s46, s46, %d' % (56*128)); e('s_sub_u32 s46, s46, s39'); e('v_min_u32 v4, 55, v0'); e('v_lshlrev_b32 v4, 7, v4'); e('v_add_u32 v%d, s46, v4' % TV)
    e('s_lshr_b32 s39, s2, 3'); e('s_mul_i32 s46, s39, %d' % (65536 // max(1, o.get('nt', 6)) + 1)); e('s_lshr_b32 s46, s46, 16'); e('s_mul_i32 s46, s46, %d' % max(1, o.get('nt', 6))); e('s_sub_u32 s39, s39, s46')
    ops = []
    units = []
    for i in range(12): units += [(i, 0, 32+i), (i, 1, 32+i)]
    for i in range(12, 28): units.append((i, 0, 44 + (i-12)//2))
    for i in range(12, 28): units.append((i, 1, 52 + (i-12)//2))
    useq = list(range(10, 20)) + [4, 5, 6, 7, 8, 9, 0, 1, 2, 3]
    upos = {(i, h): useq[u % 20] for u, (i, h, s) in enumerate(units)}
    def acc(t, j): return ACC + (t*2+j)*4
    for ps, nt in ((0, 8), (1, 6)):
        for u in range(32):
            sg = ps*16 + u//2
            for t in range(nt):
                off = (sg % NSLOT)*16384 + (u % 2)*8192; areg = (TA1, TA2)[ps] + t
                if off >= 65536: areg += nt; off -= 65536
                ops.append(dict(seg=sg, areg=areg, off=off, d2=1024, tile=ps*8+t, b=u*8, first=(u == 0), u=u, ps=ps, t=t))
    def g2op(i, h, st, t, seg, first):
        off = upos[(i, h)]*8192 + st*4096
        ops.append(dict(seg=seg, areg=TA3 + 4*(off >> 16) + t, off=off & 0xffff, d2=2048, tile=h*4+t, b=((i % 16)*2+st)*8, first=first, ps=2))
    for i in range(12):
        for st in range(2):
            for h in range(2):
                for t in range(4): g2op(i, h, st, t, 32+i, i == 0 and st == 0)
    for h in range(2):
        for i in range(12, 28):
            for st in range(2):
                for t in range(4): g2op(i, h, st, t, (44, 52)[h] + (i-12)//2, False)
    NSEG = 60; R = 8; N = len(ops)
    def rd(n):
        q = ops[n]; f = AF + (n % R)*4
        return [lds('ds_read_b64_tr_b16 v[%d:%d], v%d offset:%d' % (f, f+1, q['areg'], q['off']), ('a', n, 0)),
                lds('ds_read_b64_tr_b16 v[%d:%d], v%d offset:%d' % (f+2, f+3, q['areg'], q['off']+q['d2']), ('a', n, 1))]
    def xrd(sg):
        r = []
        for st in range(2):
            for j in range(2):
                a = ((sg*2+st)*2+j)*4
                r.append(lds('ds_read_b128 a[%d:%d], v%d offset:%d' % (a, a+3, XR+st, (sg % NSLOT)*4096 + 2048*j), ('x', sg*2+st, j)))
        return r
    S = Sched2(); fm = {}
    for n, q in enumerate(ops):
        f = AF + (n % R)*4
        for j in range(2):
            a = acc(q['tile'], j); b = q['b'] + j*4
            c = '0' if q['first'] else 'v[%d:%d]' % (a, a+3)
            i = S.add('%s v[%d:%d], v[%d:%d], a[%d:%d], %s' % (MF, a, a+3, f, f+3, b, b+3, c))
            if j == 0: fm[n] = i
    bar_gap = {}; bar_wait = {}; bar_list = {}
    seg_first = {}
    for n in range(N): seg_first.setdefault(ops[n]['seg'], n)
    WE = o.get('we', 4); LAT = o.get('lat', 6)
    first_wait = None
    for n in range(0, N, WE):
        tags = [('a', n+WE-1, 1)]
        q = ops[n]
        if q['ps'] == 0 and q['t'] == 0: tags += [('x', q['u'], 0), ('x', q['u'], 1)]
        if n: S.back[fm[n]-1].append(W(lds=tags))
        else: first_wait = W(lds=tags)
    for m in range(R, N):
        g = fm[m-R] + 1
        if ops[m]['seg'] != ops[m-1]['seg']:
            sg = ops[m]['seg']
            bar_wait[sg] = W(vm=[]); bar_list[sg] = [bar_wait[sg], 's_barrier']
            S.front[g] = bar_list[sg]; bar_gap[sg] = g
        dl = fm[m - m % WE] - 1 - LAT
        for r in rd(m): S.item('a', r, g, max(g, dl), prio=0)
    bar_gap[0] = -1; bar_gap[NSEG] = len(S.mf)
    plan = []
    for sg in range(2, 32): plan.append([max(0, sg-3), sg, g1_loads(sg), ('w', sg)])
    P_F1SET, P_F1CHK = o.get('f1set', 27), o.get('f1chk', 30)
    P_F2SET, P_F2CHK = o.get('f2set', 38), o.get('f2chk', 42)
    P_XSET, P_XCHK = o.get('xset', 56), o.get('xchk', 59)
    for u, (i, h, seg) in enumerate(units):
        if u < 10: early = o.get('u0', 17)
        elif u < 20: early = 27 + (u-10)//2 + 2
        else: early = units[u-20][2] + 2
        g = ['s_add_u32 m0, s62, %d' % (upos[(i, h)]*8192), 's_lshl_b32 s63, s%d, 5' % (S_TAB+i)]
        for p in range(2): g.append(vm('buffer_load_dwordx4 v%d, s[%d:%d], s63 offen offset:%d lds' % (WV2+p, 92+4*h, 95+4*h, 1024*p), ('u', u)))
        plan.append([early, seg, g, ('u', u)])
    for i in range(28):
        seg = 32+i if i < 12 else 44 + (i-12)//2
        early = max(16 + i + 2, P_F1CHK) if i < 16 else max(32 + (i-16) + 2, P_F2CHK)
        g = [vm('buffer_load_dwordx4 a[%d:%d], v%d, s[32:35], s%d offen offset:%d sc1' % (((i % 16)*4+k)*4, ((i % 16)*4+k)*4+3, HV, S_TAB+i, 1024*k), ('h', i)) for k in range(4)]
        plan.append([early, seg, g, ('h', i)])
    plan.sort(key=lambda x: (x[1], x[0]))
    def budget(p):
        if p < 2: return o.get('b0', 16)
        if p < 16: return 8
        if p < 32: return o.get('bp2', 6)
        if p < 44: return o.get('ba', 9)
        if p < 52: return o.get('bb', 10)
        return o.get('bc', 6)
    LEAD = o.get('lead', 2)
    per = {p: [] for p in range(NSEG)}
    todo = list(plan)
    for p in range(NSEG):
        used = 0; rest = []
        for it in todo:
            nv = sum(1 for x in it[2] if isinstance(x, I))
            if it[0] <= p and (used + nv <= budget(p) or it[1] - LEAD <= p):
                per[p].append(it); used += nv
            else: rest.append(it)
        todo = rest
    assert not todo
    for p in range(NSEG):
        for it in per[p]:
            assert p < it[1], (p, it[3])
            bar_wait[it[1]].vm.append(it[3])
    bar_wait[1].vm.append(('w', 1))
    if o.get('plan'):
        for p in range(NSEG): print(p, [it[3] for it in per[p]], file=sys.stderr)
    slow = []
    def check(lbl, tag, reload):
        nonlocal slow
        slow += [lbl + '_slow:', 's_mov_b32 s46, %d' % SPIN, lbl + '_spin:', reload, 's_waitcnt vmcnt(0)', 's_sub_u32 s46, s46, 1', 's_cmp_eq_u32 s46, 0', 's_cbranch_scc1 %s_ok' % lbl,
                 'v_cmp_ne_u32 vcc, s54, v%d' % PR, 's_nop 1', 's_cbranch_vccnz %s_spin' % lbl] + (['s_sub_u32 s46, %d, s46' % SPIN, 'v_writelane_b32 v%d, s46, %d' % (STV, 61 + len(slow)//14)] if ST else []) + ['s_branch %s_ok' % lbl]
        return [W(vm=[tag]), 'v_cmp_ne_u32 vcc, s54, v%d' % PR, 's_nop 1', 's_cbranch_vccnz %s_slow' % lbl, lbl + '_ok:']
    extra = {p: [] for p in range(NSEG)}
    PL = o.get('plag', 2)
    for lbl, pset, pchk, sset, schk, vchk in (('L_f1', P_F1SET, P_F1CHK, 8, 8, PV), ('L_f2', P_F2SET, P_F2CHK, 9, 9, PV), ('L_fx', P_XSET, P_XCHK, 10, 11, PX)):
        extra[pset].append(vm('buffer_store_dword v%d, v%d, s[32:35], s%d offen sc1' % (NON, FV, sset)))
        ld = 'buffer_load_dword v%d, v%d, s[32:35], s%d offen sc1' % (PR, vchk, schk)
        pl = 1 if lbl == 'L_fx' else PL
        extra[pchk-pl].append(vm(ld, lbl))
        bar_list[pchk][0:0] = check(lbl, lbl, ld)
    mk = [W(vm=[('scan', 2)]), 's_cmp_ge_u32 s1, %d' % OOB, 's_cbranch_scc1 L_mk_done', 'v_readfirstlane_b32 s46, v%d' % RX, 'L_mk:', 's_add_u32 s46, s46, 1', 's_cmp_eq_u32 s46, 0', 's_cbranch_scc1 L_mk']
    for i in range(12): mk += ['v_cmp_eq_u32 vcc, s46, v%d' % (RX+i), 's_nop 1', 's_cbranch_vccnz L_mk']
    mk += ['v_mov_b32 v%d, s46' % NON, 'L_mk_done:', 's_sub_u32 s1, s1, %d' % (FLG_OFF + 8192)]
    bar_list[2] += mk
    extra[2].append(vm('buffer_store_dword v%d, v%d, s[4:7], s1 offen sc1' % (NON, FV)))
    PN = o.get('pn', 11)
    e2 = 'buffer_load_dword v%d, v1, s[4:7], 0 offen sc1' % PR
    extra[PN].append(vm(e2, 'non'))
    slow += ['L_n_slow:', 's_mov_b32 s46, %d' % SPIN, 'L_n_spin:', e2, 's_waitcnt vmcnt(0)', 'v_readfirstlane_b32 s54, v%d' % PR, 's_sub_u32 s46, s46, 1', 's_cmp_eq_u32 s46, 0', 's_cbranch_scc1 L_n_ok',
             's_cmp_eq_u32 s54, 0', 's_cbranch_scc1 L_n_spin', 's_branch L_n_ok']
    bar_list[PN+3] += [W(vm=['non']), 'v_readfirstlane_b32 s54, v%d' % PR, 's_nop 0', 's_cmp_eq_u32 s54, 0', 's_cbranch_scc1 L_n_slow', 'L_n_ok:', 'v_mov_b32 v%d, s54' % NON, 's_cmp_eq_u32 s36, 0', 's_cselect_b32 s54, s54, 0']
    if o.get('fine'):
        for sg in range(1, NSEG):
            S.back[bar_gap[sg]-1][0:0] = ['v_writelane_b32 v251, s52, %d' % (sg-1), 'v_writelane_b32 v252, s50, %d' % (sg-1)]; bar_list[sg] += ['s_memtime s[52:53]', 's_memrealtime s[50:51]']
    if o.get('touch', 1):
        for k in range(o.get('nt', 6)):
            p = o.get('t0', 14) + k
            extra[p].append(['s_cmp_eq_u32 s39, %d' % k, 's_cbranch_scc1 L_t%d' % k, 'L_t%d_ok:' % k])
            slow += ['L_t%d:' % k, 'buffer_load_dword v2, v%d, s[92:95], 0 offen' % TV, 's_branch L_t%d_ok' % k]
    def mkstore(sreg, c, tag):
        return lambda j, ob: vm('buffer_store_dwordx4 v[%d:%d], v%d, s[32:35], s%d offen offset:%d sc1' % (ob, ob+3, HV, sreg + c//2, (c % 2)*2048 + j*1024), tag)
    epi1 = []; epi2 = []
    for c in range(4): epi1 += silu_chunk(acc, 2*c, lambda j, c=c: OB + ((c % 2)*2+j)*4, TMP + (c % 2)*4, mkstore(58, c, 'hs1'))
    for c in range(3): epi2 += silu_chunk(acc, 8+2*c, lambda j, c=c: OB + ((c % 2)*2+j)*4, TMP + (c % 2)*4, mkstore(60, c, 'hs2'))
    xst = [vm('buffer_store_dwordx4 v[%d:%d], v%d, s[32:35], s%d offen offset:%d sc1' % (ACC+4*i, ACC+4*i+3, XO, 12 + 2*(i//4), 1024*(i % 4)), 'xs') for i in range(8)]
    xld = [vm('buffer_load_dwordx4 v[%d:%d], v%d, s[32:35], s%d offen offset:%d sc1' % (RX+4*i, RX+4*i+3, XO, 13 + 2*(i//4), 1024*(i % 4)), 'xl') for i in range(8)]
    SEP = o.get('sep', 2)
    def isv(x): return isinstance(x, I) and x.kind == 'vm'
    def spread(chain, L, g0, g1, prio, dl=None, sep=None, slack=3, vonly=False):
        w_ = (lambda x: 1 if isv(x) else 0) if vonly else wt
        tot = max(1, sum(w_(x) for x in L)); acc_ = 0; its = []
        for x in L:
            tgt = g0 + int(acc_ * (g1 - g0) / tot)
            if vonly and not isv(x): tgt = max(g0, tgt - 2)
            its.append(S.item(chain, x, g0, min((g1 if dl is None else dl) - 1, tgt + slack), tgt, prio=prio, sep=(SEP if sep is None else sep) if isv(x) else 0, hard=(g1 if dl is None else dl) - 1)); acc_ += w_(x)
        return its
    for p in range(NSEG):
        g0, g1 = max(bar_gap[p], 0), bar_gap[p+1]
        for k, x in enumerate(extra[p]): S.item(('ex', p, k), x, g0, g0+6, prio=1)
        if 1 <= p < 16:
            xr = xrd(p)
            for k, x in enumerate(xr): S.item('x', x, g0, fm[seg_first[p] + 8*(k//2)] - 1 - LAT, prio=1)
        L = []
        for it in per[p]: L += it[2]
        if p == P_XCHK: spread('xl', xld, g0, g0+8, 1, dl=g0+24, sep=1)
        if L: spread('v', L, g0 + 1, g1, 2, dl=g1, vonly=True, slack=o.get('vslack', 3))
    p2s, As, Cs = fm[seg_first[16]], fm[seg_first[32]], fm[seg_first[52]]
    def epi(chain, L, g0, cap, span, lim):
        for g in range(g0, g0 + span): S.cap[g] = max(S.cap[g], cap)
        return spread(chain, L, g0, g0 + span, 3, dl=lim, sep=0, slack=o.get('eslack', 2))
    e1 = epi('e1', epi1, p2s + 1, o.get('e1cap', 4), o.get('e1span', 192), bar_gap[o.get('f1dl', P_F1SET-2)])
    e2_ = epi('e2', epi2, As + 5, o.get('e2cap', 5), o.get('e2span', 128), bar_gap[o.get('f2dl', P_F2SET-1)])
    xs_ = spread('xs', xst, Cs + 5, Cs + 5 + o.get('xspan', 32), 1, dl=bar_gap[P_XSET-1], sep=o.get('xsep', 4))
    bar_wait[P_F1SET].vm.append('hs1'); bar_wait[P_F2SET].vm.append('hs2'); bar_wait[P_XSET].vm.append('xs')
    S.run()
    if o.get('gaps'): print('epi1 ends gap', e1[-1]['gap'], 'lim', bar_gap[P_F1SET], 'epi2 ends', e2_[-1]['gap'], bar_gap[P_F2SET], 'xs ends', xs_[-1]['gap'], file=sys.stderr)
    for w in bar_wait.values():
        if not w.vm: w.vm = None
    P.append(W(vm=('w', 0))); e('s_barrier')
    P += stamp()
    if o.get('fine'): e('s_memtime s[52:53]'); e('s_memrealtime s[50:51]')
    P += xrd(0)
    for n in range(R): P += rd(n)
    P.append(first_wait)
    body = S.emit()
    if ST:
        marks = [seg_first[s] for s in o.get('stseg', (4, 8, 16, 24, 32, 38, 44, 48, 52, 56))] if not o.get('fine') else []
        sts = [stamp() for _ in marks]
        for n, st_ in reversed(list(zip(marks, sts))):
            k = next(i for i, x in enumerate(body) if x is S.mf[fm[n]])
            body[k:k] = st_
    P += [x for x in body if not (isinstance(x, W) and x.vm is None and x.lds is None)]
    if o.get('fine'): e('v_writelane_b32 v251, s52, 59'); e('v_writelane_b32 v252, s50, 59')
    if o.get('gaps'):
        for p in range(NSEG):
            g0, g1 = bar_gap[p], bar_gap[p+1]
            ld = [S.load(g) for g in range(max(g0, 0), min(g1, len(S.mf)))]
            print(p, len(ld), 'sum', sum(ld), 'over2', sum(max(0, x-2) for x in ld), ''.join(str(min(x, 9)) for x in ld), file=sys.stderr)
    P += stamp()
    P.append(W(vm=['xl'])); e('s_nop 6')
    P += stamp()
    k = 0
    for j in range(2):
        for u in range(2):
            ob = OB + (k % 2)*4; k += 1
            for tt in range(2):
                a = acc(4+2*u+tt, j); r = RX + ((2*u+tt)*2+j)*4
                for i in range(4): e('v_add_f32 v%d, v%d, v%d' % (a+i, a+i, r+i))
                e('v_cvt_pk_bf16_f32 v%d, v%d, v%d' % (ob+2*tt, a, a+1)); e('v_cvt_pk_bf16_f32 v%d, v%d, v%d' % (ob+2*tt+1, a+2, a+3))
            e('s_nop 1')
            e('v_permlane16_swap_b32 v%d, v%d' % (ob, ob+2)); e('v_permlane16_swap_b32 v%d, v%d' % (ob+1, ob+3))
            P.append(vm('buffer_store_dwordx4 v[%d:%d], v%d, s[28:31], %s offen offset:%d' % (ob, ob+3, OV, 's57' if j else '0', 64*u)))
    if ST:
        P += stamp(); e('s_waitcnt vmcnt(0)'); P += stamp()
        if o.get('dbgout') is not None:
            e('s_nop 0'); e('v_readlane_b32 s46, v%d, 0' % STV); e('v_lshlrev_b32 v3, 1, v0'); e('v_and_b32 v4, 1, v0'); e('v_lshl_add_u32 v3, v4, 12, v3'); e('v_subrev_u32 v5, s46, v%d' % STV)
            e('v_cmp_eq_u32 vcc, 0, v0'); e('v_mov_b32 v4, 4096'); e('s_nop 0'); e('v_cndmask_b32 v3, v3, v4, vcc')
            e('s_lshl_b32 s46, s2, 2'); e('s_add_u32 s46, s46, s36'); e('s_cmp_eq_u32 s46, %d' % (4*o['dbgout'])); e('s_cselect_b32 s46, 0, 4096')
            e('buffer_store_dword v5, v3, s[4:7], s46 offen')
        e('s_mov_b32 s34, 0x10000000')
        e('s_lshl_b32 s46, s2, 2'); e('s_add_u32 s46, s46, s36'); e('s_lshl_b32 s46, s46, 8'); e('s_add_u32 s46, s46, %d' % STAMP_OFF)
        e('v_lshlrev_b32 v1, 2, v0'); e('buffer_store_dword v%d, v1, s[32:35], s46 offen' % STV)
        e('s_add_u32 s46, s46, 0x100000'); e('buffer_store_dword v251, v1, s[32:35], s46 offen'); e('s_add_u32 s46, s46, 0x100000'); e('buffer_store_dword v252, v1, s[32:35], s46 offen'); e('s_waitcnt vmcnt(0)')
    if o.get('padto'):
        e('s_waitcnt vmcnt(0)'); e('v_readfirstlane_b32 s46, v253'); e('L_pad:'); e('s_memrealtime s[48:49]'); e('s_waitcnt lgkmcnt(0)'); e('s_sub_u32 s48, s48, s46'); e('s_cmp_lt_u32 s48, %d' % (100*o['padto'])); e('s_cbranch_scc1 L_pad')
    e('L_end:'); e('s_endpgm')
    P += slow
    L = fix_m0(resolve(P))
    for m in check_hazards(L): print('HAZARD', m, file=sys.stderr)
    kd = ['.amdhsa_kernel %s' % NAME, '  .amdhsa_next_free_vgpr 512', '  .amdhsa_next_free_sgpr 102', '  .amdhsa_accum_offset 256',
          '  .amdhsa_group_segment_fixed_size 0', '  .amdhsa_kernarg_size 48', '  .amdhsa_user_sgpr_count 2',
          '  .amdhsa_user_sgpr_kernarg_segment_ptr 1', '  .amdhsa_system_sgpr_workgroup_id_x 1', '  .amdhsa_float_denorm_mode_32 3', '.end_amdhsa_kernel']
    s = HDR + '; @launch grid=(256,1,1) block=(256,1,1) lds=163840\n.amdgcn_target "amdgcn-amd-amdhsa--gfx950"\n.text\n'
    s += '\n'.join(L) + '\n.section .rodata,"a"\n.p2align 6\n' + '\n'.join(kd) + '\n'
    if ST: print('stamps:', nst[0], file=sys.stderr)
    return s

def opts(args):
    o = {}
    for a in args:
        k, v = a.split('=')
        try: v = float(v) if '.' in v else int(v)
        except ValueError: pass
        o[k] = v
    return o
if __name__ == '__main__':
    open(sys.argv[1], 'w').write(gen(opts(sys.argv[2:])))
```

```python
import sys
from asmlib import *

HDR = open('standalone__dense_activation_silu__prompt.s.ref').read().split('; Override launch')[0]
NAME = 'standalone__dense_activation_silu__prompt_kernel'
MF = 'v_mfma_f32_16x16x32_bf16'
LOG2E = 0x3fb8aa3b
WS_BYTES = 0x2000000
XCH_OFF = 0x1000000
FLG_OFF = 0x1800000
STAMP_OFF = 0xF000000
OOB = 0x7000000
ACC, AF, TA1, TA2, XV, WV, XR, HV, TMP, OB = 16, 128, 160, 176, 188, 192, 196, 198, 200, 208
TA3, WV2, OV, XO, NON, PV, PR, FV, PX, SC = 224, 236, 238, 239, 240, 241, 242, 243, 244, 4
RX = 80
STV = 250
S_TAB = 64

def srd(d, ptr, nbytes, add=None):
    o = []
    if add is None:
        o += ['s_mov_b32 s%d, s%d' % (d, ptr), 's_and_b32 s%d, s%d, 0xffff' % (d+1, ptr+1), 's_mov_b32 s%d, %d' % (d+2, nbytes)]
    else:
        o += ['s_add_u32 s%d, s%d, s%d' % (d, ptr, add), 's_addc_u32 s%d, s%d, 0' % (d+1, ptr+1), 's_and_b32 s%d, s%d, 0xffff' % (d+1, d+1),
              's_sub_u32 s%d, %d, s%d' % (d+2, nbytes, add)]
    o.append('s_mov_b32 s%d, 0x20000' % (d+3))
    return o

def fix_m0(lines):
    out = []
    for ln in lines:
        if out and ' lds' in ln and ln.startswith('buffer_load') and ' m0,' in out[-1]: out.append('s_nop 0')
        out.append(ln)
    return out

def silu_chunk(acc_tile, c_t0, outbuf, T, store):
    it = []
    for j in range(2):
        ob = outbuf(j)
        for tt in range(2):
            a = acc_tile(c_t0 + tt, j)
            for i in range(4): it.append('v_mul_f32 v%d, s56, v%d' % (T+i, a+i))
            for i in range(4): it.append(tr('v_exp_f32 v%d, v%d' % (T+i, T+i)))
            for i in range(4): it.append('v_add_f32 v%d, 1.0, v%d' % (T+i, T+i))
            for i in range(4): it.append(tr('v_rcp_f32 v%d, v%d' % (T+i, T+i)))
            for i in range(4): it.append('v_mul_f32 v%d, v%d, v%d' % (T+i, T+i, a+i))
            it.append('v_cvt_pk_bf16_f32 v%d, v%d, v%d' % (ob+2*tt, T, T+1))
            it.append('v_cvt_pk_bf16_f32 v%d, v%d, v%d' % (ob+2*tt+1, T+2, T+3))
        it.append(store(j, ob))
    return it

def gen(o):
    P = []; e = P.append
    ST = o.get('stamps')
    nst = [0]
    def stamp():
        if not ST: return []
        k = nst[0]; nst[0] += 1
        return ['s_memrealtime s[52:53]', 's_waitcnt lgkmcnt(0)', 'v_writelane_b32 v%d, s52, %d' % (STV, 2*k), 's_memtime s[52:53]', 's_waitcnt lgkmcnt(0)', 'v_writelane_b32 v%d, s52, %d' % (STV, 2*k+1)]
    NSLOT = 5; XBASE = 81920
    SPIN = o.get('spin', 200000)
    e('.globl %s' % NAME); e('.p2align 8'); e('.type %s,@function' % NAME); e(NAME + ':')
    if o.get('pad0'): e('s_memrealtime s[100:101]')
    e('s_cmp_ge_u32 s2, 256'); e('s_cbranch_scc1 L_end')
    e('s_load_dwordx4 s[4:7], s[0:1], 0'); e('s_load_dwordx4 s[8:11], s[0:1], 16'); e('s_load_dwordx4 s[12:15], s[0:1], 32')
    if ST: e('v_mov_b32 v%d, 0' % STV)
    if o.get('padto'):
        if not o.get('pad0'): e('s_memrealtime s[100:101]')
        e('s_waitcnt lgkmcnt(0)'); e('v_mov_b32 v253, s100')
    P += stamp()
    e('v_lshrrev_b32 v1, 6, v0'); e('s_and_b32 s46, s2, 7'); e('v_readfirstlane_b32 s36, v1'); e('s_lshr_b32 s47, s2, 3')
    e('s_lshr_b32 s51, s46, 1'); e('s_lshl_b32 s37, s51, 2'); e('s_lshr_b32 s48, s47, 3'); e('s_add_u32 s37, s37, s48')
    e('s_and_b32 s42, s46, 1'); e('s_lshl_b32 s38, s42, 3'); e('s_and_b32 s49, s47, 7'); e('s_add_u32 s38, s38, s49')
    e('s_lshl_b32 s43, s48, 1'); e('s_add_u32 s43, s43, s49'); e('s_and_b32 s52, s51, %d' % o.get('ntrg', 1)); e('s_add_u32 s43, s43, s52'); e('s_and_b32 s43, s43, 7')
    e('v_and_b32 v0, 63, v0')
    rm = o.get('rot', 2)
    if rm == 0: e('s_mov_b32 s39, 0')
    elif rm == 1:
        e('s_lshl_b32 s39, s49, 1'); e('s_lshl_b32 s52, s48, 2'); e('s_add_u32 s39, s39, s52'); e('s_add_u32 s39, s39, s51'); e('s_and_b32 s39, s39, 15')
    elif rm == 2:
        e('s_add_u32 s39, s49, s48'); e('s_and_b32 s39, s39, 1'); e('s_lshl_b32 s39, s39, 2'); e('s_add_u32 s39, s39, s51'); e('s_lshl_b32 s52, s42, 1'); e('s_add_u32 s39, s39, s52'); e('s_lshl_b32 s39, s39, 1'); e('s_and_b32 s39, s39, 15')
    elif rm == 3:
        e('s_add_u32 s39, s49, s48'); e('s_and_b32 s39, s39, 3'); e('s_lshl_b32 s39, s39, 2'); e('s_add_u32 s39, s39, s51'); e('s_lshl_b32 s52, s42, 1'); e('s_add_u32 s39, s39, s52'); e('s_and_b32 s39, s39, 15')
    elif rm == 4:
        e('s_lshl_b32 s39, s42, 1'); e('s_add_u32 s39, s39, s51'); e('s_lshl_b32 s39, s39, 2'); e('s_and_b32 s39, s39, 15')
    e('s_mov_b32 s101, s51')
    e('s_mov_b32 s55, s49')
    e('s_and_b32 s50, s38, 1'); e('s_mul_i32 s51, s38, 448'); e('s_lshl_b32 s52, s50, 6'); e('s_sub_u32 s51, s51, s52')
    e('s_lshl_b32 s52, s50, 8'); e('s_add_u32 s58, s51, s52'); e('s_sub_u32 s59, s51, s52'); e('s_add_u32 s59, s59, 256')
    e('v_lshrrev_b32 v3, 3, v0'); e('v_and_b32 v4, 7, v0')
    e('s_lshl_b32 s46, s37, 2'); e('s_add_u32 s46, s46, s36'); e('s_lshl_b32 s47, s46, 16')
    e('v_lshrrev_b32 v5, 1, v3')
    for p in range(4):
        if p % 2 == 0: e('v_xor_b32 v6, v4, v5')
        else: e('v_or_b32 v7, 4, v5'); e('v_xor_b32 v6, v4, v7')
        e('v_lshlrev_b32 v6, 4, v6'); e('v_lshl_add_u32 v6, v3, 11, v6')
        e('s_add_u32 s48, s47, %d' % (8*p*2048 - 1024*p)); e('v_add_u32 v%d, s48, v6' % (XV+p))
    e('v_lshrrev_b32 v3, 4, v0'); e('v_bfe_u32 v4, v0, 1, 3'); e('v_and_b32 v5, 1, v0'); e('v_lshlrev_b32 v5, 4, v5')
    e('s_mul_i32 s47, s36, %d' % (16*7168)); e('s_movk_i32 s48, 7168'); e('v_mul_lo_u32 v8, v3, s48'); e('v_add_u32 v8, v8, v5')
    for p in range(4):
        if p < 2: e('v_xor_b32 v6, v4, v3')
        else: e('v_or_b32 v7, 4, v3'); e('v_xor_b32 v6, v4, v7')
        e('v_lshl_add_u32 v6, v6, 5, v8')
        e('s_add_u32 s48, s47, %d' % (4*p*7168 - 1024*p)); e('v_add_u32 v%d, s48, v6' % (WV+p))
    e('s_lshl_b32 s44, s36, 12')
    e('s_mul_i32 s45, s36, 20480'); e('s_add_u32 s45, s45, %d' % XBASE)
    e('s_lshl_b32 s40, s39, 7')
    e('s_waitcnt lgkmcnt(0)')
    P += srd(16, 4, 2048*1024*2); P += srd(20, 6, 1024*3584*2, 58); P += srd(24, 6, 1024*3584*2, 59)
    def g1_loads(sg):
        slot = sg % NSLOT; g = []
        cur, nxt = (40, 3)[sg % 2], (3, 40)[sg % 2]
        g.append('s_add_u32 m0, s44, %d' % (slot*16384))
        g.append('s_mul_i32 s41, s%d, 3584' % cur)
        wsrd = 20 if sg < 16 else 24
        for p in range(4): g.append(vm('buffer_load_dwordx4 v%d, s[%d:%d], s41 offen offset:%d lds' % (WV+p, wsrd, wsrd+3, 1024*p), ('w', sg)))
        if sg < 16: g.append('s_add_u32 m0, s45, %d' % (slot*4096))
        g.append('s_add_u32 s%d, s%d, 128' % (nxt, cur))
        if sg < 16:
            for p in range(4): g.append(vm('buffer_load_dwordx4 v%d, s[16:19], s%d offen offset:%d lds' % (XV+p, cur, 1024*p), ('w', sg)))
        g.append('s_and_b32 s%d, s%d, 2047' % (nxt, nxt))
        return g
    P += g1_loads(0)
    if o.get('cpf', 1):
        e('s_getpc_b64 s[46:47]'); e('L_pf:'); e('v_min_u32 v1, 3, v0'); e('v_lshlrev_b32 v1, 7, v1'); e('s_lshr_b32 s48, s2, 3'); e('s_lshl_b32 s48, s48, 2'); e('s_add_u32 s48, s48, s36'); e('s_lshl_b32 s48, s48, 9')
        e('v_add_u32 v1, s48, v1'); e('s_mov_b32 s48, L_end-L_pf'); e('v_min_u32 v9, s48, v1'); e(vm('global_load_dword v2, v9, s[46:47]'))
    P += srd(32, 14, WS_BYTES); P += srd(28, 10, 2048*1024*2)
    e('s_lshl_b32 s46, s43, 8'); e('s_lshl_b32 s47, s42, 7'); e('s_add_u32 s48, s46, s47'); e('s_xor_b32 s47, s47, 128'); e('s_add_u32 s47, s46, s47')
    P += srd(92, 8, 3584*1024*2, 47); P += srd(96, 8, 3584*1024*2, 48); e('s_mov_b32 s39, s47')
    e('v_lshrrev_b32 v3, 4, v0')
    e('v_and_b32 v4, 15, v0'); e('v_lshlrev_b32 v4, 11, v4'); e('v_and_b32 v5, 1, v3'); e('v_lshl_add_u32 v4, v5, 5, v4'); e('v_lshrrev_b32 v5, 1, v3'); e('v_lshl_add_u32 v4, v5, 4, v4')
    e('s_lshl_b32 s46, s37, 2'); e('s_add_u32 s46, s46, s36'); e('s_lshl_b32 s47, s46, 16'); e('s_add_u32 s47, s47, s48'); e('v_add_u32 v%d, s47, v4' % OV)
    e('s_mul_i32 s46, s46, %d' % (112*2048)); e('v_lshlrev_b32 v4, 4, v0'); e('v_add_u32 v%d, s46, v4' % HV)
    e('s_lshl_b32 s46, s36, 13'); e('s_add_u32 s46, s46, %d' % XCH_OFF); e('v_add_u32 v%d, s46, v4' % XO)
    P += srd(4, 12, 256)
    e('s_lshl_b32 s46, s37, 1'); e('s_add_u32 s46, s46, s42'); e('s_lshl_b32 s46, s46, 7'); e('s_add_u32 s46, s46, %d' % FLG_OFF)
    e('s_cmp_eq_u32 s36, 0'); e('s_cselect_b32 s8, s46, %d' % OOB); e('s_add_u32 s9, s8, 4096'); e('s_add_u32 s10, s8, 8192'); e('s_xor_b32 s11, s10, 128')
    e('s_lshl_b32 s12, s2, 15'); e('s_xor_b32 s13, s12, 32768')
    e('s_add_u32 s14, s12, 4096'); e('s_add_u32 s15, s13, 4096')
    e('v_and_b32 v4, 7, v0'); e('v_lshlrev_b32 v%d, 2, v4' % PV)
    e('s_lshl_b32 s46, s55, 2'); e('v_mov_b32 v%d, s46' % PX); e('v_mov_b32 v4, %d' % OOB); e('v_cmp_eq_u32 vcc, 0, v0'); e('s_nop 1'); e('v_cndmask_b32 v%d, v4, v%d, vcc' % (FV, PX))
    e('s_mov_b32 s1, %d' % FLG_OFF); e('s_or_b32 s46, s2, s36'); e('s_cmp_eq_u32 s46, 0'); e('s_cselect_b32 s1, s1, %d' % OOB)
    e('v_lshrrev_b32 v4, 1, v0'); e('v_lshlrev_b32 v4, 7, v4'); e('v_and_b32 v5, 1, v0'); e('v_lshl_add_u32 v1, v5, 4, v4')
    for i in range(3):
        if i: e('s_add_u32 s1, s1, 4096')
        P.append(vm('buffer_load_dwordx4 v[%d:%d], v1, s[32:35], s1 offen sc1' % (RX+4*i, RX+4*i+3), ('scan', i)))
    P += g1_loads(1)
    e('v_lshrrev_b32 v3, 4, v0'); e('v_bfe_u32 v4, v0, 2, 2'); e('v_and_b32 v5, 3, v0')
    e('v_lshl_add_u32 v6, v3, 3, v4'); e('v_lshlrev_b32 v6, 8, v6'); e('v_lshl_add_u32 v6, v5, 3, v6')
    e('v_and_b32 v7, 1, v3'); e('v_lshl_add_u32 v7, v7, 2, v4')
    for t in range(8):
        e('v_xor_b32 v8, %d, v7' % t); e('v_lshl_add_u32 v%d, v8, 5, v6' % (TA1+t)); e('v_add_u32 v%d, 0x10000, v%d' % (TA1+8+t, TA1+t))
    e('s_lshl_b32 s46, s50, 1')
    for t in range(6):
        e('s_add_u32 s47, s46, %d' % t); e('v_xor_b32 v8, s47, v7'); e('v_lshl_add_u32 v%d, v8, 5, v6' % (TA2+t)); e('v_add_u32 v%d, 0x10000, v%d' % (TA2+6+t, TA2+t))
    e('v_lshl_add_u32 v6, v3, 2, v4'); e('v_bfe_u32 v7, v6, 1, 2'); e('v_lshlrev_b32 v6, 7, v6'); e('v_lshl_add_u32 v6, v5, 3, v6')
    for t in range(4):
        e('v_xor_b32 v8, %d, v7' % t); e('v_lshl_add_u32 v%d, v8, 5, v6' % (TA3+t)); e('v_add_u32 v%d, 0x10000, v%d' % (TA3+4+t, TA3+t)); e('v_add_u32 v%d, 0x20000, v%d' % (TA3+8+t, TA3+t))
    e('v_and_b32 v4, 15, v0'); e('v_lshrrev_b32 v5, 1, v4'); e('v_xor_b32 v5, v5, v3')
    e('v_lshlrev_b32 v4, 7, v4'); e('v_add_u32 v4, s45, v4')
    e('v_lshl_add_u32 v%d, v5, 4, v4' % XR); e('v_xor_b32 v5, 4, v5'); e('v_lshl_add_u32 v%d, v5, 4, v4' % (XR+1))
    e('v_lshrrev_b32 v3, 3, v0'); e('v_bfe_u32 v4, v0, 1, 2'); e('v_lshrrev_b32 v5, 1, v3'); e('v_xor_b32 v4, v4, v5')
    e('v_and_b32 v5, 1, v0'); e('v_lshlrev_b32 v5, 4, v5'); e('v_lshl_add_u32 v4, v4, 5, v5'); e('v_lshl_add_u32 v4, v3, 11, v4')
    e('s_lshl_b32 s46, s36, 15'); e('v_add_u32 v%d, s46, v4' % WV2); e('v_add_u32 v%d, %d, v%d' % (WV2+1, 8*2048 - 1024, WV2))
    e('s_lshl_b32 s62, s36, 11')
    e('s_mul_i32 s46, s38, 7'); e('s_mul_i32 s47, s50, 3'); e('s_add_u32 s47, s47, s46'); e('s_lshl_b32 s58, s47, 11'); e('s_add_u32 s59, s58, 4096')
    e('s_lshl_b32 s47, s50, 2'); e('s_sub_u32 s47, s46, s47'); e('s_add_u32 s47, s47, 4'); e('s_lshl_b32 s60, s47, 11'); e('s_add_u32 s61, s60, 4096')
    e('s_mov_b32 s56, 0x%x' % (LOG2E | 0x80000000)); e('s_mov_b32 s57, 32768')
    if o.get('norot2'): e('s_mov_b32 s55, 0')
    e('v_lshrrev_b32 v3, 1, v0'); e('v_add_u32 v3, s55, v3'); e('v_and_b32 v3, 7, v3')
    e('v_lshrrev_b32 v4, 1, v3'); e('v_mul_u32_u24 v4, 7, v4'); e('v_and_b32 v3, 1, v3'); e('v_mul_u32_u24 v3, 5, v3'); e('v_add_u32 v4, v4, v3'); e('s_lshr_b32 s46, s101, 1'); e('s_and_b32 s46, s46, %d' % o.get('ntrg', 1)); e('v_xor_b32 v3, s46, v0'); e('v_and_b32 v3, 1, v3'); e('v_add_u32 v4, v4, v3')
    e('v_subrev_u32 v3, 16, v0'); e('v_and_b32 v3, 63, v3'); e('v_mul_u32_u24 v5, 171, v3'); e('v_lshrrev_b32 v5, 9, v5')
    e('v_mul_u32_u24 v6, 3, v5'); e('v_sub_u32 v3, v3, v6'); e('s_and_b32 s46, s101, %d' % (3*o.get('ntrg', 1))); e('v_add_u32 v3, s46, v3'); e('v_mul_u32_u24 v6, 171, v3'); e('v_lshrrev_b32 v6, 9, v6'); e('v_mul_u32_u24 v6, 3, v6'); e('v_sub_u32 v3, v3, v6'); e('s_lshr_b32 s46, s55, 1'); e('v_add_u32 v5, s46, v5'); e('v_and_b32 v5, 3, v5')
    e('v_mul_u32_u24 v5, 7, v5'); e('v_add3_u32 v5, v5, v3, 2')
    e('v_cmp_gt_u32 vcc, 16, v0'); e('s_mul_i32 s46, s42, 28'); e('s_nop 0'); e('v_cndmask_b32 v4, v5, v4, vcc'); e('v_add_u32 v4, s46, v4'); e('v_lshlrev_b32 v4, 12, v4'); e('s_nop 0')
    for i in range(28): e('v_readlane_b32 s%d, v4, %d' % (S_TAB+i, i))
    e('v_mov_b32 v1, 0')
    TV = 245
    e('s_lshl_b32 s46, s2, 2'); e('s_add_u32 s46, s46, s36'); e('s_mul_i32 s46, s46, %d' % (56*128)); e('s_sub_u32 s46, s46, s39'); e('v_min_u32 v4, 55, v0'); e('v_lshlrev_b32 v4, 7, v4'); e('v_add_u32 v%d, s46, v4' % TV)
    e('s_lshr_b32 s39, s2, 3'); e('s_mul_i32 s46, s39, %d' % (65536 // max(1, o.get('nt', 6)) + 1)); e('s_lshr_b32 s46, s46, 16'); e('s_mul_i32 s46, s46, %d' % max(1, o.get('nt', 6))); e('s_sub_u32 s39, s39, s46')
    ops = []
    units = []
    for i in range(12): units += [(i, 0, 32+i), (i, 1, 32+i)]
    for i in range(12, 28): units.append((i, 0, 44 + (i-12)//2))
    for i in range(12, 28): units.append((i, 1, 52 + (i-12)//2))
    useq = list(range(10, 20)) + [4, 5, 6, 7, 8, 9, 0, 1, 2, 3]
    upos = {(i, h): useq[u % 20] for u, (i, h, s) in enumerate(units)}
    def acc(t, j): return ACC + (t*2+j)*4
    for ps, nt in ((0, 8), (1, 6)):
        for u in range(32):
            sg = ps*16 + u//2
            for t in range(nt):
                off = (sg % NSLOT)*16384 + (u % 2)*8192; areg = (TA1, TA2)[ps] + t
                if off >= 65536: areg += nt; off -= 65536
                ops.append(dict(seg=sg, areg=areg, off=off, d2=1024, tile=ps*8+t, b=u*8, first=(u == 0), u=u, ps=ps, t=t))
    def g2op(i, h, st, t, seg, first):
        off = upos[(i, h)]*8192 + st*4096
        ops.append(dict(seg=seg, areg=TA3 + 4*(off >> 16) + t, off=off & 0xffff, d2=2048, tile=h*4+t, b=((i % 16)*2+st)*8, first=first, ps=2))
    for i in range(12):
        for st in range(2):
            for h in range(2):
                for t in range(4): g2op(i, h, st, t, 32+i, i == 0 and st == 0)
    for h in range(2):
        for i in range(12, 28):
            for st in range(2):
                for t in range(4): g2op(i, h, st, t, (44, 52)[h] + (i-12)//2, False)
    NSEG = 60; R = 8; N = len(ops)
    def rd(n):
        q = ops[n]; f = AF + (n % R)*4
        return [lds('ds_read_b64_tr_b16 v[%d:%d], v%d offset:%d' % (f, f+1, q['areg'], q['off']), ('a', n, 0)),
                lds('ds_read_b64_tr_b16 v[%d:%d], v%d offset:%d' % (f+2, f+3, q['areg'], q['off']+q['d2']), ('a', n, 1))]
    def xrd(sg):
        r = []
        for st in range(2):
            for j in range(2):
                a = ((sg*2+st)*2+j)*4
                r.append(lds('ds_read_b128 a[%d:%d], v%d offset:%d' % (a, a+3, XR+st, (sg % NSLOT)*4096 + 2048*j), ('x', sg*2+st, j)))
        return r
    S = Sched2(); fm = {}
    for n, q in enumerate(ops):
        f = AF + (n % R)*4
        for j in range(2):
            a = acc(q['tile'], j); b = q['b'] + j*4
            c = '0' if q['first'] else 'v[%d:%d]' % (a, a+3)
            i = S.add('%s v[%d:%d], v[%d:%d], a[%d:%d], %s' % (MF, a, a+3, f, f+3, b, b+3, c))
            if j == 0: fm[n] = i
    bar_gap = {}; bar_wait = {}; bar_list = {}
    seg_first = {}
    for n in range(N): seg_first.setdefault(ops[n]['seg'], n)
    WE = o.get('we', 4); LAT = o.get('lat', 6)
    first_wait = None
    for n in range(0, N, WE):
        tags = [('a', n+WE-1, 1)]
        q = ops[n]
        if q['ps'] == 0 and q['t'] == 0: tags += [('x', q['u'], 0), ('x', q['u'], 1)]
        if n: S.back[fm[n]-1].append(W(lds=tags))
        else: first_wait = W(lds=tags)
    for m in range(R, N):
        g = fm[m-R] + 1
        if ops[m]['seg'] != ops[m-1]['seg']:
            sg = ops[m]['seg']
            bar_wait[sg] = W(vm=[]); bar_list[sg] = [bar_wait[sg], 's_barrier']
            S.front[g] = bar_list[sg]; bar_gap[sg] = g
        dl = fm[m - m % WE] - 1 - LAT
        for r in rd(m): S.item('a', r, g, max(g, dl), prio=0)
    bar_gap[0] = -1; bar_gap[NSEG] = len(S.mf)
    plan = []
    for sg in range(2, 32): plan.append([max(0, sg-3), sg, g1_loads(sg), ('w', sg)])
    P_F1SET, P_F1CHK = o.get('f1set', 27), o.get('f1chk', 30)
    P_F2SET, P_F2CHK = o.get('f2set', 38), o.get('f2chk', 42)
    P_XSET, P_XCHK = o.get('xset', 56), o.get('xchk', 59)
    for u, (i, h, seg) in enumerate(units):
        if u < 10: early = o.get('u0', 17)
        elif u < 20: early = 27 + (u-10)//2 + 2
        else: early = units[u-20][2] + 2
        g = ['s_add_u32 m0, s62, %d' % (upos[(i, h)]*8192), 's_lshl_b32 s63, s%d, 5' % (S_TAB+i)]
        for p in range(2): g.append(vm('buffer_load_dwordx4 v%d, s[%d:%d], s63 offen offset:%d lds' % (WV2+p, 92+4*h, 95+4*h, 1024*p), ('u', u)))
        plan.append([early, seg, g, ('u', u)])
    for i in range(28):
        seg = 32+i if i < 12 else 44 + (i-12)//2
        early = max(16 + i + 2, P_F1CHK) if i < 16 else max(32 + (i-16) + 2, P_F2CHK)
        g = [vm('buffer_load_dwordx4 a[%d:%d], v%d, s[32:35], s%d offen offset:%d sc1' % (((i % 16)*4+k)*4, ((i % 16)*4+k)*4+3, HV, S_TAB+i, 1024*k), ('h', i)) for k in range(4)]
        plan.append([early, seg, g, ('h', i)])
    plan.sort(key=lambda x: (x[1], x[0]))
    def budget(p):
        if p < 2: return o.get('b0', 16)
        if p < 16: return 8
        if p < 32: return o.get('bp2', 6)
        if p < 44: return o.get('ba', 9)
        if p < 52: return o.get('bb', 10)
        return o.get('bc', 6)
    LEAD = o.get('lead', 2)
    per = {p: [] for p in range(NSEG)}
    todo = list(plan)
    for p in range(NSEG):
        used = 0; rest = []
        for it in todo:
            nv = sum(1 for x in it[2] if isinstance(x, I))
            if it[0] <= p and (used + nv <= budget(p) or it[1] - LEAD <= p):
                per[p].append(it); used += nv
            else: rest.append(it)
        todo = rest
    assert not todo
    for p in range(NSEG):
        for it in per[p]:
            assert p < it[1], (p, it[3])
            bar_wait[it[1]].vm.append(it[3])
    bar_wait[1].vm.append(('w', 1))
    if o.get('plan'):
        for p in range(NSEG): print(p, [it[3] for it in per[p]], file=sys.stderr)
    slow = []
    def check(lbl, tag, reload):
        nonlocal slow
        slow += [lbl + '_slow:', 's_mov_b32 s46, %d' % SPIN, lbl + '_spin:', reload, 's_waitcnt vmcnt(0)', 's_sub_u32 s46, s46, 1', 's_cmp_eq_u32 s46, 0', 's_cbranch_scc1 %s_ok' % lbl,
                 'v_cmp_ne_u32 vcc, s54, v%d' % PR, 's_nop 1', 's_cbranch_vccnz %s_spin' % lbl] + (['s_sub_u32 s46, %d, s46' % SPIN, 'v_writelane_b32 v%d, s46, %d' % (STV, 61 + len(slow)//14)] if ST else []) + ['s_branch %s_ok' % lbl]
        return [W(vm=[tag]), 'v_cmp_ne_u32 vcc, s54, v%d' % PR, 's_nop 1', 's_cbranch_vccnz %s_slow' % lbl, lbl + '_ok:']
    extra = {p: [] for p in range(NSEG)}
    PL = o.get('plag', 2)
    for lbl, pset, pchk, sset, schk, vchk in (('L_f1', P_F1SET, P_F1CHK, 8, 8, PV), ('L_f2', P_F2SET, P_F2CHK, 9, 9, PV), ('L_fx', P_XSET, P_XCHK, 10, 11, PX)):
        extra[pset].append(vm('buffer_store_dword v%d, v%d, s[32:35], s%d offen sc1' % (NON, FV, sset)))
        ld = 'buffer_load_dword v%d, v%d, s[32:35], s%d offen sc1' % (PR, vchk, schk)
        pl = 1 if lbl == 'L_fx' else PL
        extra[pchk-pl].append(vm(ld, lbl))
        bar_list[pchk][0:0] = check(lbl, lbl, ld)
    mk = [W(vm=[('scan', 2)]), 's_cmp_ge_u32 s1, %d' % OOB, 's_cbranch_scc1 L_mk_done', 'v_readfirstlane_b32 s46, v%d' % RX, 'L_mk:', 's_add_u32 s46, s46, 1', 's_cmp_eq_u32 s46, 0', 's_cbranch_scc1 L_mk']
    for i in range(12): mk += ['v_cmp_eq_u32 vcc, s46, v%d' % (RX+i), 's_nop 1', 's_cbranch_vccnz L_mk']
    mk += ['v_mov_b32 v%d, s46' % NON, 'L_mk_done:', 's_sub_u32 s1, s1, %d' % (FLG_OFF + 8192)]
    bar_list[2] += mk
    extra[2].append(vm('buffer_store_dword v%d, v%d, s[4:7], s1 offen sc1' % (NON, FV)))
    PN = o.get('pn', 11)
    e2 = 'buffer_load_dword v%d, v1, s[4:7], 0 offen sc1' % PR
    extra[PN].append(vm(e2, 'non'))
    slow += ['L_n_slow:', 's_mov_b32 s46, %d' % SPIN, 'L_n_spin:', e2, 's_waitcnt vmcnt(0)', 'v_readfirstlane_b32 s54, v%d' % PR, 's_sub_u32 s46, s46, 1', 's_cmp_eq_u32 s46, 0', 's_cbranch_scc1 L_n_ok',
             's_cmp_eq_u32 s54, 0', 's_cbranch_scc1 L_n_spin', 's_branch L_n_ok']
    bar_list[PN+3] += [W(vm=['non']), 'v_readfirstlane_b32 s54, v%d' % PR, 's_nop 0', 's_cmp_eq_u32 s54, 0', 's_cbranch_scc1 L_n_slow', 'L_n_ok:', 'v_mov_b32 v%d, s54' % NON, 's_cmp_eq_u32 s36, 0', 's_cselect_b32 s54, s54, 0']
    if o.get('fine'):
        for sg in range(1, NSEG):
            S.back[bar_gap[sg]-1][0:0] = ['v_writelane_b32 v251, s52, %d' % (sg-1), 'v_writelane_b32 v252, s50, %d' % (sg-1)]; bar_list[sg] += ['s_memtime s[52:53]', 's_memrealtime s[50:51]']
    if o.get('touch', 1):
        for k in range(o.get('nt', 6)):
            p = o.get('t0', 14) + k
            extra[p].append(['s_cmp_eq_u32 s39, %d' % k, 's_cbranch_scc1 L_t%d' % k, 'L_t%d_ok:' % k])
            slow += ['L_t%d:' % k, 'buffer_load_dword v2, v%d, s[92:95], 0 offen' % TV, 's_branch L_t%d_ok' % k]
    def mkstore(sreg, c, tag):
        return lambda j, ob: vm('buffer_store_dwordx4 v[%d:%d], v%d, s[32:35], s%d offen offset:%d sc1' % (ob, ob+3, HV, sreg + c//2, (c % 2)*2048 + j*1024), tag)
    epi1 = []; epi2 = []
    for c in range(4): epi1 += silu_chunk(acc, 2*c, lambda j, c=c: OB + ((c % 2)*2+j)*4, TMP + (c % 2)*4, mkstore(58, c, 'hs1'))
    for c in range(3): epi2 += silu_chunk(acc, 8+2*c, lambda j, c=c: OB + ((c % 2)*2+j)*4, TMP + (c % 2)*4, mkstore(60, c, 'hs2'))
    xst = [vm('buffer_store_dwordx4 v[%d:%d], v%d, s[32:35], s%d offen offset:%d sc1' % (ACC+4*i, ACC+4*i+3, XO, 12 + 2*(i//4), 1024*(i % 4)), 'xs') for i in range(8)]
    xld = [vm('buffer_load_dwordx4 v[%d:%d], v%d, s[32:35], s%d offen offset:%d sc1' % (RX+4*i, RX+4*i+3, XO, 13 + 2*(i//4), 1024*(i % 4)), 'xl') for i in range(8)]
    SEP = o.get('sep', 2)
    def isv(x): return isinstance(x, I) and x.kind == 'vm'
    def spread(chain, L, g0, g1, prio, dl=None, sep=None, slack=3, vonly=False):
        w_ = (lambda x: 1 if isv(x) else 0) if vonly else wt
        tot = max(1, sum(w_(x) for x in L)); acc_ = 0; its = []
        for x in L:
            tgt = g0 + int(acc_ * (g1 - g0) / tot)
            if vonly and not isv(x): tgt = max(g0, tgt - 2)
            its.append(S.item(chain, x, g0, min((g1 if dl is None else dl) - 1, tgt + slack), tgt, prio=prio, sep=(SEP if sep is None else sep) if isv(x) else 0, hard=(g1 if dl is None else dl) - 1)); acc_ += w_(x)
        return its
    for p in range(NSEG):
        g0, g1 = max(bar_gap[p], 0), bar_gap[p+1]
        for k, x in enumerate(extra[p]): S.item(('ex', p, k), x, g0, g0+6, prio=1)
        if 1 <= p < 16:
            xr = xrd(p)
            for k, x in enumerate(xr): S.item('x', x, g0, fm[seg_first[p] + 8*(k//2)] - 1 - LAT, prio=1)
        L = []
        for it in per[p]: L += it[2]
        if p == P_XCHK: spread('xl', xld, g0, g0+8, 1, dl=g0+24, sep=1)
        if L: spread('v', L, g0 + 1, g1, 2, dl=g1, vonly=True, slack=o.get('vslack', 3))
    p2s, As, Cs = fm[seg_first[16]], fm[seg_first[32]], fm[seg_first[52]]
    def epi(chain, L, g0, cap, span, lim):
        for g in range(g0, g0 + span): S.cap[g] = max(S.cap[g], cap)
        return spread(chain, L, g0, g0 + span, 3, dl=lim, sep=0, slack=o.get('eslack', 2))
    e1 = epi('e1', epi1, p2s + 1, o.get('e1cap', 4), o.get('e1span', 192), bar_gap[o.get('f1dl', P_F1SET-2)])
    e2_ = epi('e2', epi2, As + 5, o.get('e2cap', 5), o.get('e2span', 128), bar_gap[o.get('f2dl', P_F2SET-1)])
    xs_ = spread('xs', xst, Cs + 5, Cs + 5 + o.get('xspan', 32), 1, dl=bar_gap[P_XSET-1], sep=o.get('xsep', 4))
    bar_wait[P_F1SET].vm.append('hs1'); bar_wait[P_F2SET].vm.append('hs2'); bar_wait[P_XSET].vm.append('xs')
    S.run()
    if o.get('gaps'): print('epi1 ends gap', e1[-1]['gap'], 'lim', bar_gap[P_F1SET], 'epi2 ends', e2_[-1]['gap'], bar_gap[P_F2SET], 'xs ends', xs_[-1]['gap'], file=sys.stderr)
    for w in bar_wait.values():
        if not w.vm: w.vm = None
    P.append(W(vm=('w', 0))); e('s_barrier')
    P += stamp()
    if o.get('fine'): e('s_memtime s[52:53]'); e('s_memrealtime s[50:51]')
    P += xrd(0)
    for n in range(R): P += rd(n)
    P.append(first_wait)
    body = S.emit()
    if ST:
        marks = [seg_first[s] for s in o.get('stseg', (4, 8, 16, 24, 32, 38, 44, 48, 52, 56))] if not o.get('fine') else []
        sts = [stamp() for _ in marks]
        for n, st_ in reversed(list(zip(marks, sts))):
            k = next(i for i, x in enumerate(body) if x is S.mf[fm[n]])
            body[k:k] = st_
    P += [x for x in body if not (isinstance(x, W) and x.vm is None and x.lds is None)]
    if o.get('fine'): e('v_writelane_b32 v251, s52, 59'); e('v_writelane_b32 v252, s50, 59')
    if o.get('gaps'):
        for p in range(NSEG):
            g0, g1 = bar_gap[p], bar_gap[p+1]
            ld = [S.load(g) for g in range(max(g0, 0), min(g1, len(S.mf)))]
            print(p, len(ld), 'sum', sum(ld), 'over2', sum(max(0, x-2) for x in ld), ''.join(str(min(x, 9)) for x in ld), file=sys.stderr)
    P += stamp()
    P.append(W(vm=['xl'])); e('s_nop 6')
    P += stamp()
    k = 0
    for j in range(2):
        for u in range(2):
            ob = OB + (k % 2)*4; k += 1
            for tt in range(2):
                a = acc(4+2*u+tt, j); r = RX + ((2*u+tt)*2+j)*4
                for i in range(4): e('v_add_f32 v%d, v%d, v%d' % (a+i, a+i, r+i))
                e('v_cvt_pk_bf16_f32 v%d, v%d, v%d' % (ob+2*tt, a, a+1)); e('v_cvt_pk_bf16_f32 v%d, v%d, v%d' % (ob+2*tt+1, a+2, a+3))
            e('s_nop 1')
            e('v_permlane16_swap_b32 v%d, v%d' % (ob, ob+2)); e('v_permlane16_swap_b32 v%d, v%d' % (ob+1, ob+3))
            P.append(vm('buffer_store_dwordx4 v[%d:%d], v%d, s[28:31], %s offen offset:%d %s' % (ob, ob+3, OV, 's57' if j else '0', 64*u, o.get('oaux', '').replace('_', ' '))))
    if ST:
        P += stamp(); e('s_waitcnt vmcnt(0)'); P += stamp()
        if o.get('dbgout') is not None:
            e('s_nop 0'); e('v_readlane_b32 s46, v%d, 0' % STV); e('v_lshlrev_b32 v3, 1, v0'); e('v_and_b32 v4, 1, v0'); e('v_lshl_add_u32 v3, v4, 12, v3'); e('v_subrev_u32 v5, s46, v%d' % STV)
            e('v_cmp_eq_u32 vcc, 0, v0'); e('v_mov_b32 v4, 4096'); e('s_nop 0'); e('v_cndmask_b32 v3, v3, v4, vcc')
            e('s_lshl_b32 s46, s2, 2'); e('s_add_u32 s46, s46, s36'); e('s_cmp_eq_u32 s46, %d' % (4*o['dbgout'])); e('s_cselect_b32 s46, 0, 4096')
            e('buffer_store_dword v5, v3, s[4:7], s46 offen')
        e('s_mov_b32 s34, 0x10000000')
        e('s_lshl_b32 s46, s2, 2'); e('s_add_u32 s46, s46, s36'); e('s_lshl_b32 s46, s46, 8'); e('s_add_u32 s46, s46, %d' % STAMP_OFF)
        e('v_lshlrev_b32 v1, 2, v0'); e('buffer_store_dword v%d, v1, s[32:35], s46 offen' % STV)
        e('s_add_u32 s46, s46, 0x100000'); e('buffer_store_dword v251, v1, s[32:35], s46 offen'); e('s_add_u32 s46, s46, 0x100000'); e('buffer_store_dword v252, v1, s[32:35], s46 offen'); e('s_waitcnt vmcnt(0)')
    if o.get('padto'):
        e('s_waitcnt vmcnt(0)'); e('v_readfirstlane_b32 s46, v253'); e('L_pad:'); e('s_memrealtime s[48:49]'); e('s_waitcnt lgkmcnt(0)'); e('s_sub_u32 s48, s48, s46'); e('s_cmp_lt_u32 s48, %d' % (100*o['padto'])); e('s_cbranch_scc1 L_pad')
    e('L_end:'); e('s_endpgm')
    P += slow
    L = fix_m0(resolve(P))
    for m in check_hazards(L): print('HAZARD', m, file=sys.stderr)
    kd = ['.amdhsa_kernel %s' % NAME, '  .amdhsa_next_free_vgpr 512', '  .amdhsa_next_free_sgpr 102', '  .amdhsa_accum_offset 256',
          '  .amdhsa_group_segment_fixed_size 0', '  .amdhsa_kernarg_size 48', '  .amdhsa_user_sgpr_count 2',
          '  .amdhsa_user_sgpr_kernarg_segment_ptr 1', '  .amdhsa_system_sgpr_workgroup_id_x 1', '  .amdhsa_float_denorm_mode_32 3', '.end_amdhsa_kernel']
    s = HDR + '; @launch grid=(256,1,1) block=(256,1,1) lds=163840\n.amdgcn_target "amdgcn-amd-amdhsa--gfx950"\n.text\n'
    s += '\n'.join(L) + '\n.section .rodata,"a"\n.p2align 6\n' + '\n'.join(kd) + '\n'
    if ST: print('stamps:', nst[0], file=sys.stderr)
    return s

def opts(args):
    o = {}
    for a in args:
        k, v = a.split('=')
        try: v = float(v) if '.' in v else int(v)
        except ValueError: pass
        o[k] = v
    return o
if __name__ == '__main__':
    open(sys.argv[1], 'w').write(gen(opts(sys.argv[2:])))
```

```python
import sys
from asmlib import *

HDR = open('standalone__dense_activation_silu__prompt.s.ref').read().split('; Override launch')[0]
NAME = 'standalone__dense_activation_silu__prompt_kernel'
MF = 'v_mfma_f32_16x16x32_bf16'
LOG2E = 0x3fb8aa3b
WS_BYTES = 0x2000000
XCH_OFF = 0x1000000
FLG_OFF = 0x1800000
STAMP_OFF = 0xF000000
OOB = 0x7000000
ACC, AF, TA1, TA2, XV, WV, XR, HV, TMP, OB = 16, 128, 160, 176, 188, 192, 196, 198, 200, 208
TA3, WV2, OV, XO, NON, PV, PR, FV, PX, SC = 224, 236, 238, 239, 240, 241, 242, 243, 244, 4
RX = 80
STV = 250
S_TAB = 64

def srd(d, ptr, nbytes, add=None):
    o = []
    if add is None:
        o += ['s_mov_b32 s%d, s%d' % (d, ptr), 's_and_b32 s%d, s%d, 0xffff' % (d+1, ptr+1), 's_mov_b32 s%d, %d' % (d+2, nbytes)]
    else:
        o += ['s_add_u32 s%d, s%d, s%d' % (d, ptr, add), 's_addc_u32 s%d, s%d, 0' % (d+1, ptr+1), 's_and_b32 s%d, s%d, 0xffff' % (d+1, d+1),
              's_sub_u32 s%d, %d, s%d' % (d+2, nbytes, add)]
    o.append('s_mov_b32 s%d, 0x20000' % (d+3))
    return o

def fix_m0(lines):
    out = []
    for ln in lines:
        if out and ' lds' in ln and ln.startswith('buffer_load') and ' m0,' in out[-1]: out.append('s_nop 0')
        out.append(ln)
    return out

def silu_chunk(acc_tile, c_t0, outbuf, T, store):
    it = []
    for j in range(2):
        ob = outbuf(j)
        for tt in range(2):
            a = acc_tile(c_t0 + tt, j)
            for i in range(4): it.append('v_mul_f32 v%d, s56, v%d' % (T+i, a+i))
            for i in range(4): it.append(tr('v_exp_f32 v%d, v%d' % (T+i, T+i)))
            for i in range(4): it.append('v_add_f32 v%d, 1.0, v%d' % (T+i, T+i))
            for i in range(4): it.append(tr('v_rcp_f32 v%d, v%d' % (T+i, T+i)))
            for i in range(4): it.append('v_mul_f32 v%d, v%d, v%d' % (T+i, T+i, a+i))
            it.append('v_cvt_pk_bf16_f32 v%d, v%d, v%d' % (ob+2*tt, T, T+1))
            it.append('v_cvt_pk_bf16_f32 v%d, v%d, v%d' % (ob+2*tt+1, T+2, T+3))
        it.append(store(j, ob))
    return it

def gen(o):
    P = []; e = P.append
    ST = o.get('stamps')
    nst = [0]
    def stamp():
        if not ST: return []
        k = nst[0]; nst[0] += 1
        return ['s_memrealtime s[52:53]', 's_waitcnt lgkmcnt(0)', 'v_writelane_b32 v%d, s52, %d' % (STV, 2*k), 's_memtime s[52:53]', 's_waitcnt lgkmcnt(0)', 'v_writelane_b32 v%d, s52, %d' % (STV, 2*k+1)]
    NSLOT = 5; XBASE = 81920
    SPIN = o.get('spin', 200000)
    e('.globl %s' % NAME); e('.p2align 8'); e('.type %s,@function' % NAME); e(NAME + ':')
    if o.get('pad0'): e('s_memrealtime s[100:101]')
    e('s_cmp_ge_u32 s2, 256'); e('s_cbranch_scc1 L_end')
    e('s_load_dwordx4 s[4:7], s[0:1], 0'); e('s_load_dwordx4 s[8:11], s[0:1], 16'); e('s_load_dwordx4 s[12:15], s[0:1], 32')
    if ST: e('v_mov_b32 v%d, 0' % STV)
    if o.get('padto'):
        if not o.get('pad0'): e('s_memrealtime s[100:101]')
        e('s_waitcnt lgkmcnt(0)'); e('v_mov_b32 v253, s100')
    P += stamp()
    e('v_lshrrev_b32 v1, 6, v0'); e('s_and_b32 s46, s2, 7'); e('v_readfirstlane_b32 s36, v1'); e('s_lshr_b32 s47, s2, 3')
    e('s_lshr_b32 s51, s46, 1'); e('s_lshl_b32 s37, s51, 2'); e('s_lshr_b32 s48, s47, 3'); e('s_add_u32 s37, s37, s48')
    e('s_and_b32 s42, s46, 1'); e('s_lshl_b32 s38, s42, 3'); e('s_and_b32 s49, s47, 7'); e('s_add_u32 s38, s38, s49')
    e('s_lshl_b32 s43, s48, 1'); e('s_add_u32 s43, s43, s49'); e('s_and_b32 s52, s51, %d' % o.get('ntrg', 1)); e('s_add_u32 s43, s43, s52'); e('s_and_b32 s43, s43, 7')
    e('v_and_b32 v0, 63, v0')
    rm = o.get('rot', 2)
    if rm == 0: e('s_mov_b32 s39, 0')
    elif rm == 1:
        e('s_lshl_b32 s39, s49, 1'); e('s_lshl_b32 s52, s48, 2'); e('s_add_u32 s39, s39, s52'); e('s_add_u32 s39, s39, s51'); e('s_and_b32 s39, s39, 15')
    elif rm == 2:
        e('s_add_u32 s39, s49, s48'); e('s_and_b32 s39, s39, 1'); e('s_lshl_b32 s39, s39, 2'); e('s_add_u32 s39, s39, s51'); e('s_lshl_b32 s52, s42, 1'); e('s_add_u32 s39, s39, s52'); e('s_lshl_b32 s39, s39, 1'); e('s_and_b32 s39, s39, 15')
    elif rm == 3:
        e('s_add_u32 s39, s49, s48'); e('s_and_b32 s39, s39, 3'); e('s_lshl_b32 s39, s39, 2'); e('s_add_u32 s39, s39, s51'); e('s_lshl_b32 s52, s42, 1'); e('s_add_u32 s39, s39, s52'); e('s_and_b32 s39, s39, 15')
    elif rm == 4:
        e('s_lshl_b32 s39, s42, 1'); e('s_add_u32 s39, s39, s51'); e('s_lshl_b32 s39, s39, 2'); e('s_and_b32 s39, s39, 15')
    e('s_mov_b32 s101, s51')
    e('s_mov_b32 s55, s49')
    e('s_and_b32 s50, s38, 1'); e('s_mul_i32 s51, s38, 448'); e('s_lshl_b32 s52, s50, 6'); e('s_sub_u32 s51, s51, s52')
    e('s_lshl_b32 s52, s50, 8'); e('s_add_u32 s58, s51, s52'); e('s_sub_u32 s59, s51, s52'); e('s_add_u32 s59, s59, 256')
    e('v_lshrrev_b32 v3, 3, v0'); e('v_and_b32 v4, 7, v0')
    e('s_lshl_b32 s46, s37, 2'); e('s_add_u32 s46, s46, s36'); e('s_lshl_b32 s47, s46, 16')
    e('v_lshrrev_b32 v5, 1, v3')
    for p in range(4):
        if p % 2 == 0: e('v_xor_b32 v6, v4, v5')
        else: e('v_or_b32 v7, 4, v5'); e('v_xor_b32 v6, v4, v7')
        e('v_lshlrev_b32 v6, 4, v6'); e('v_lshl_add_u32 v6, v3, 11, v6')
        e('s_add_u32 s48, s47, %d' % (8*p*2048 - 1024*p)); e('v_add_u32 v%d, s48, v6' % (XV+p))
    e('v_lshrrev_b32 v3, 4, v0'); e('v_bfe_u32 v4, v0, 1, 3'); e('v_and_b32 v5, 1, v0'); e('v_lshlrev_b32 v5, 4, v5')
    e('s_mul_i32 s47, s36, %d' % (16*7168)); e('s_movk_i32 s48, 7168'); e('v_mul_lo_u32 v8, v3, s48'); e('v_add_u32 v8, v8, v5')
    for p in range(4):
        if p < 2: e('v_xor_b32 v6, v4, v3')
        else: e('v_or_b32 v7, 4, v3'); e('v_xor_b32 v6, v4, v7')
        e('v_lshl_add_u32 v6, v6, 5, v8')
        e('s_add_u32 s48, s47, %d' % (4*p*7168 - 1024*p)); e('v_add_u32 v%d, s48, v6' % (WV+p))
    e('s_lshl_b32 s44, s36, 12')
    e('s_mul_i32 s45, s36, 20480'); e('s_add_u32 s45, s45, %d' % XBASE)
    e('s_lshl_b32 s40, s39, 7')
    e('s_waitcnt lgkmcnt(0)')
    P += srd(16, 4, 2048*1024*2); P += srd(20, 6, 1024*3584*2, 58); P += srd(24, 6, 1024*3584*2, 59)
    def g1_loads(sg):
        slot = sg % NSLOT; g = []
        cur, nxt = (40, 3)[sg % 2], (3, 40)[sg % 2]
        g.append('s_add_u32 m0, s44, %d' % (slot*16384))
        g.append('s_mul_i32 s41, s%d, 3584' % cur)
        wsrd = 20 if sg < 16 else 24
        for p in range(4): g.append(vm('buffer_load_dwordx4 v%d, s[%d:%d], s41 offen offset:%d lds' % (WV+p, wsrd, wsrd+3, 1024*p), ('w', sg)))
        if sg < 16: g.append('s_add_u32 m0, s45, %d' % (slot*4096))
        g.append('s_add_u32 s%d, s%d, 128' % (nxt, cur))
        if sg < 16:
            for p in range(4): g.append(vm('buffer_load_dwordx4 v%d, s[16:19], s%d offen offset:%d lds' % (XV+p, cur, 1024*p), ('w', sg)))
        g.append('s_and_b32 s%d, s%d, 2047' % (nxt, nxt))
        return g
    P += g1_loads(0)
    if o.get('cpf', 1):
        e('s_getpc_b64 s[46:47]'); e('L_pf:'); e('v_min_u32 v1, 3, v0'); e('v_lshlrev_b32 v1, 7, v1'); e('s_lshr_b32 s48, s2, 3'); e('s_lshl_b32 s48, s48, 2'); e('s_add_u32 s48, s48, s36'); e('s_lshl_b32 s48, s48, 9')
        e('v_add_u32 v1, s48, v1'); e('s_mov_b32 s48, L_end-L_pf'); e('v_min_u32 v9, s48, v1'); e(vm('global_load_dword v2, v9, s[46:47]'))
    P += srd(32, 14, WS_BYTES); P += srd(28, 10, 2048*1024*2)
    e('s_lshl_b32 s46, s43, 8'); e('s_lshl_b32 s47, s42, 7'); e('s_add_u32 s48, s46, s47'); e('s_xor_b32 s47, s47, 128'); e('s_add_u32 s47, s46, s47')
    P += srd(92, 8, 3584*1024*2, 47); P += srd(96, 8, 3584*1024*2, 48); e('s_mov_b32 s39, s47')
    e('v_lshrrev_b32 v3, 4, v0')
    e('v_and_b32 v4, 15, v0'); e('v_lshlrev_b32 v4, 11, v4'); e('v_and_b32 v5, 1, v3'); e('v_lshl_add_u32 v4, v5, 5, v4'); e('v_lshrrev_b32 v5, 1, v3'); e('v_lshl_add_u32 v4, v5, 4, v4')
    e('s_lshl_b32 s46, s37, 2'); e('s_add_u32 s46, s46, s36'); e('s_lshl_b32 s47, s46, 16'); e('s_add_u32 s47, s47, s48'); e('v_add_u32 v%d, s47, v4' % OV)
    e('s_mul_i32 s46, s46, %d' % (112*2048)); e('v_lshlrev_b32 v4, 4, v0'); e('v_add_u32 v%d, s46, v4' % HV)
    e('s_lshl_b32 s46, s36, 13'); e('s_add_u32 s46, s46, %d' % XCH_OFF); e('v_add_u32 v%d, s46, v4' % XO)
    P += srd(4, 12, 256)
    e('s_lshl_b32 s46, s37, 1'); e('s_add_u32 s46, s46, s42'); e('s_lshl_b32 s46, s46, 7'); e('s_add_u32 s46, s46, %d' % FLG_OFF)
    e('s_cmp_eq_u32 s36, 0'); e('s_cselect_b32 s8, s46, %d' % OOB); e('s_add_u32 s9, s8, 4096'); e('s_add_u32 s10, s8, 8192'); e('s_xor_b32 s11, s10, 128')
    e('s_lshl_b32 s12, s2, 15'); e('s_xor_b32 s13, s12, 32768')
    e('s_add_u32 s14, s12, 4096'); e('s_add_u32 s15, s13, 4096')
    e('v_and_b32 v4, 7, v0'); e('v_lshlrev_b32 v%d, 2, v4' % PV)
    e('s_lshl_b32 s46, s55, 2'); e('v_mov_b32 v%d, s46' % PX); e('v_mov_b32 v4, %d' % OOB); e('v_cmp_eq_u32 vcc, 0, v0'); e('s_nop 1'); e('v_cndmask_b32 v%d, v4, v%d, vcc' % (FV, PX))
    e('s_mov_b32 s1, %d' % FLG_OFF); e('s_or_b32 s46, s2, s36'); e('s_cmp_eq_u32 s46, 0'); e('s_cselect_b32 s1, s1, %d' % OOB)
    e('v_lshrrev_b32 v4, 1, v0'); e('v_lshlrev_b32 v4, 7, v4'); e('v_and_b32 v5, 1, v0'); e('v_lshl_add_u32 v1, v5, 4, v4')
    for i in range(3):
        if i: e('s_add_u32 s1, s1, 4096')
        P.append(vm('buffer_load_dwordx4 v[%d:%d], v1, s[32:35], s1 offen sc1' % (RX+4*i, RX+4*i+3), ('scan', i)))
    P += g1_loads(1)
    e('v_lshrrev_b32 v3, 4, v0'); e('v_bfe_u32 v4, v0, 2, 2'); e('v_and_b32 v5, 3, v0')
    e('v_lshl_add_u32 v6, v3, 3, v4'); e('v_lshlrev_b32 v6, 8, v6'); e('v_lshl_add_u32 v6, v5, 3, v6')
    e('v_and_b32 v7, 1, v3'); e('v_lshl_add_u32 v7, v7, 2, v4')
    for t in range(8):
        e('v_xor_b32 v8, %d, v7' % t); e('v_lshl_add_u32 v%d, v8, 5, v6' % (TA1+t)); e('v_add_u32 v%d, 0x10000, v%d' % (TA1+8+t, TA1+t))
    e('s_lshl_b32 s46, s50, 1')
    for t in range(6):
        e('s_add_u32 s47, s46, %d' % t); e('v_xor_b32 v8, s47, v7'); e('v_lshl_add_u32 v%d, v8, 5, v6' % (TA2+t)); e('v_add_u32 v%d, 0x10000, v%d' % (TA2+6+t, TA2+t))
    e('v_lshl_add_u32 v6, v3, 2, v4'); e('v_bfe_u32 v7, v6, 1, 2'); e('v_lshlrev_b32 v6, 7, v6'); e('v_lshl_add_u32 v6, v5, 3, v6')
    for t in range(4):
        e('v_xor_b32 v8, %d, v7' % t); e('v_lshl_add_u32 v%d, v8, 5, v6' % (TA3+t)); e('v_add_u32 v%d, 0x10000, v%d' % (TA3+4+t, TA3+t)); e('v_add_u32 v%d, 0x20000, v%d' % (TA3+8+t, TA3+t))
    e('v_and_b32 v4, 15, v0'); e('v_lshrrev_b32 v5, 1, v4'); e('v_xor_b32 v5, v5, v3')
    e('v_lshlrev_b32 v4, 7, v4'); e('v_add_u32 v4, s45, v4')
    e('v_lshl_add_u32 v%d, v5, 4, v4' % XR); e('v_xor_b32 v5, 4, v5'); e('v_lshl_add_u32 v%d, v5, 4, v4' % (XR+1))
    e('v_lshrrev_b32 v3, 3, v0'); e('v_bfe_u32 v4, v0, 1, 2'); e('v_lshrrev_b32 v5, 1, v3'); e('v_xor_b32 v4, v4, v5')
    e('v_and_b32 v5, 1, v0'); e('v_lshlrev_b32 v5, 4, v5'); e('v_lshl_add_u32 v4, v4, 5, v5'); e('v_lshl_add_u32 v4, v3, 11, v4')
    e('s_lshl_b32 s46, s36, 15'); e('v_add_u32 v%d, s46, v4' % WV2); e('v_add_u32 v%d, %d, v%d' % (WV2+1, 8*2048 - 1024, WV2))
    e('s_lshl_b32 s62, s36, 11')
    e('s_mul_i32 s46, s38, 7'); e('s_mul_i32 s47, s50, 3'); e('s_add_u32 s47, s47, s46'); e('s_lshl_b32 s58, s47, 11'); e('s_add_u32 s59, s58, 4096')
    e('s_lshl_b32 s47, s50, 2'); e('s_sub_u32 s47, s46, s47'); e('s_add_u32 s47, s47, 4'); e('s_lshl_b32 s60, s47, 11'); e('s_add_u32 s61, s60, 4096')
    e('s_mov_b32 s56, 0x%x' % (LOG2E | 0x80000000)); e('s_mov_b32 s57, 32768')
    if o.get('norot2'): e('s_mov_b32 s55, 0')
    e('v_lshrrev_b32 v3, 1, v0'); e('v_add_u32 v3, s55, v3'); e('v_and_b32 v3, 7, v3')
    e('v_lshrrev_b32 v4, 1, v3'); e('v_mul_u32_u24 v4, 7, v4'); e('v_and_b32 v3, 1, v3'); e('v_mul_u32_u24 v3, 5, v3'); e('v_add_u32 v4, v4, v3'); e('s_lshr_b32 s46, s101, 1'); e('s_and_b32 s46, s46, %d' % o.get('ntrg', 1)); e('v_xor_b32 v3, s46, v0'); e('v_and_b32 v3, 1, v3'); e('v_add_u32 v4, v4, v3')
    e('v_subrev_u32 v3, 16, v0'); e('v_and_b32 v3, 63, v3'); e('v_mul_u32_u24 v5, 171, v3'); e('v_lshrrev_b32 v5, 9, v5')
    e('v_mul_u32_u24 v6, 3, v5'); e('v_sub_u32 v3, v3, v6'); e('s_and_b32 s46, s101, %d' % (3*o.get('ntrg', 1))); e('v_add_u32 v3, s46, v3'); e('v_mul_u32_u24 v6, 171, v3'); e('v_lshrrev_b32 v6, 9, v6'); e('v_mul_u32_u24 v6, 3, v6'); e('v_sub_u32 v3, v3, v6'); e('s_lshr_b32 s46, s55, 1'); e('v_add_u32 v5, s46, v5'); e('v_and_b32 v5, 3, v5')
    e('v_mul_u32_u24 v5, 7, v5'); e('v_add3_u32 v5, v5, v3, 2')
    e('v_cmp_gt_u32 vcc, 16, v0'); e('s_mul_i32 s46, s42, 28'); e('s_nop 0'); e('v_cndmask_b32 v4, v5, v4, vcc'); e('v_add_u32 v4, s46, v4'); e('v_lshlrev_b32 v4, 12, v4'); e('s_nop 0')
    for i in range(28): e('v_readlane_b32 s%d, v4, %d' % (S_TAB+i, i))
    e('v_mov_b32 v1, 0')
    TV = 245
    e('s_lshl_b32 s46, s2, 2'); e('s_add_u32 s46, s46, s36'); e('s_mul_i32 s46, s46, %d' % (56*128)); e('s_sub_u32 s46, s46, s39'); e('v_min_u32 v4, 55, v0'); e('v_lshlrev_b32 v4, 7, v4'); e('v_add_u32 v%d, s46, v4' % TV)
    e('s_lshr_b32 s39, s2, 3'); e('s_mul_i32 s46, s39, %d' % (65536 // max(1, o.get('nt', 6)) + 1)); e('s_lshr_b32 s46, s46, 16'); e('s_mul_i32 s46, s46, %d' % max(1, o.get('nt', 6))); e('s_sub_u32 s39, s39, s46')
    ops = []
    units = []
    for i in range(12): units += [(i, 0, 32+i), (i, 1, 32+i)]
    for i in range(12, 28): units.append((i, 0, 44 + (i-12)//2))
    for i in range(12, 28): units.append((i, 1, 52 + (i-12)//2))
    useq = list(range(10, 20)) + [4, 5, 6, 7, 8, 9, 0, 1, 2, 3]
    upos = {(i, h): useq[u % 20] for u, (i, h, s) in enumerate(units)}
    def acc(t, j): return ACC + (t*2+j)*4
    for ps, nt in ((0, 8), (1, 6)):
        for u in range(32):
            sg = ps*16 + u//2
            for t in range(nt):
                off = (sg % NSLOT)*16384 + (u % 2)*8192; areg = (TA1, TA2)[ps] + t
                if off >= 65536: areg += nt; off -= 65536
                ops.append(dict(seg=sg, areg=areg, off=off, d2=1024, tile=ps*8+t, b=u*8, first=(u == 0), u=u, ps=ps, t=t))
    def g2op(i, h, st, t, seg, first):
        off = upos[(i, h)]*8192 + st*4096
        ops.append(dict(seg=seg, areg=TA3 + 4*(off >> 16) + t, off=off & 0xffff, d2=2048, tile=h*4+t, b=((i % 16)*2+st)*8, first=first, ps=2))
    for i in range(12):
        for st in range(2):
            for h in range(2):
                for t in range(4): g2op(i, h, st, t, 32+i, i == 0 and st == 0)
    for h in range(2):
        for i in range(12, 28):
            for st in range(2):
                for t in range(4): g2op(i, h, st, t, (44, 52)[h] + (i-12)//2, False)
    NSEG = 60; R = 8; N = len(ops)
    def rd(n):
        q = ops[n]; f = AF + (n % R)*4
        return [lds('ds_read_b64_tr_b16 v[%d:%d], v%d offset:%d' % (f, f+1, q['areg'], q['off']), ('a', n, 0)),
                lds('ds_read_b64_tr_b16 v[%d:%d], v%d offset:%d' % (f+2, f+3, q['areg'], q['off']+q['d2']), ('a', n, 1))]
    def xrd(sg):
        r = []
        for st in range(2):
            for j in range(2):
                a = ((sg*2+st)*2+j)*4
                r.append(lds('ds_read_b128 a[%d:%d], v%d offset:%d' % (a, a+3, XR+st, (sg % NSLOT)*4096 + 2048*j), ('x', sg*2+st, j)))
        return r
    S = Sched2(); fm = {}
    for n, q in enumerate(ops):
        f = AF + (n % R)*4
        for j in range(2):
            a = acc(q['tile'], j); b = q['b'] + j*4
            c = '0' if q['first'] else 'v[%d:%d]' % (a, a+3)
            i = S.add('%s v[%d:%d], v[%d:%d], a[%d:%d], %s' % (MF, a, a+3, f, f+3, b, b+3, c))
            if j == 0: fm[n] = i
    bar_gap = {}; bar_wait = {}; bar_list = {}
    seg_first = {}
    for n in range(N): seg_first.setdefault(ops[n]['seg'], n)
    WE = o.get('we', 4); LAT = o.get('lat', 6)
    first_wait = None
    for n in range(0, N, WE):
        tags = [('a', n+WE-1, 1)]
        q = ops[n]
        if q['ps'] == 0 and q['t'] == 0: tags += [('x', q['u'], 0), ('x', q['u'], 1)]
        if n: S.back[fm[n]-1].append(W(lds=tags))
        else: first_wait = W(lds=tags)
    for m in range(R, N):
        g = fm[m-R] + 1
        if ops[m]['seg'] != ops[m-1]['seg']:
            sg = ops[m]['seg']
            bar_wait[sg] = W(vm=[]); bar_list[sg] = [bar_wait[sg], 's_barrier']
            S.front[g] = bar_list[sg]; bar_gap[sg] = g
        dl = fm[m - m % WE] - 1 - LAT
        for r in rd(m): S.item('a', r, g, max(g, dl), prio=0)
    bar_gap[0] = -1; bar_gap[NSEG] = len(S.mf)
    plan = []
    for sg in range(2, 32): plan.append([max(0, sg-3), sg, g1_loads(sg), ('w', sg)])
    P_F1SET, P_F1CHK = o.get('f1set', 26), o.get('f1chk', 30)
    P_F2SET, P_F2CHK = o.get('f2set', 38), o.get('f2chk', 42)
    P_XSET, P_XCHK = o.get('xset', 56), o.get('xchk', 59)
    for u, (i, h, seg) in enumerate(units):
        if u < 10: early = o.get('u0', 21)
        elif u < 20: early = 27 + (u-10)//2 + 2
        else: early = units[u-20][2] + 2
        if u >= 40: early = max(early, seg - o.get('clead', 3))
        g = ['s_add_u32 m0, s62, %d' % (upos[(i, h)]*8192), 's_lshl_b32 s63, s%d, 5' % (S_TAB+i)]
        for p in range(2): g.append(vm('buffer_load_dwordx4 v%d, s[%d:%d], s63 offen offset:%d lds' % (WV2+p, 92+4*h, 95+4*h, 1024*p), ('u', u)))
        plan.append([early, seg, g, ('u', u)])
    for i in range(28):
        seg = 32+i if i < 12 else 44 + (i-12)//2
        early = max(16 + i + 2, P_F1CHK) if i < 16 else max(32 + (i-16) + 2, P_F2CHK)
        g = [vm('buffer_load_dwordx4 a[%d:%d], v%d, s[32:35], s%d offen offset:%d sc1' % (((i % 16)*4+k)*4, ((i % 16)*4+k)*4+3, HV, S_TAB+i, 1024*k), ('h', i)) for k in range(4)]
        plan.append([early, seg, g, ('h', i)])
    plan.sort(key=lambda x: (x[1], x[0]))
    def budget(p):
        if p < 2: return o.get('b0', 16)
        if p < 16: return 8
        if p < 32: return o.get('bp2', 8)
        if p < 37: return o.get('ba0', 12)
        if p < 44: return o.get('ba', 8)
        if p < 52: return o.get('bb', 8)
        return o.get('bc', 6)
    LEAD = o.get('lead', 2)
    per = {p: [] for p in range(NSEG)}
    todo = list(plan)
    for p in range(NSEG):
        used = 0; rest = []
        for it in todo:
            nv = sum(1 for x in it[2] if isinstance(x, I))
            if it[0] <= p and (used + nv <= budget(p) or it[1] - LEAD <= p):
                per[p].append(it); used += nv
            else: rest.append(it)
        todo = rest
    assert not todo
    for p in range(NSEG):
        for it in per[p]:
            assert p < it[1], (p, it[3])
            bar_wait[it[1]].vm.append(it[3])
    bar_wait[1].vm.append(('w', 1))
    if o.get('plan'):
        for p in range(NSEG): print(p, [it[3] for it in per[p]], file=sys.stderr)
    slow = []
    def check(lbl, tag, reload):
        nonlocal slow
        slow += [lbl + '_slow:', 's_mov_b32 s46, %d' % SPIN, lbl + '_spin:', reload, 's_waitcnt vmcnt(0)', 's_sub_u32 s46, s46, 1', 's_cmp_eq_u32 s46, 0', 's_cbranch_scc1 %s_ok' % lbl,
                 'v_cmp_ne_u32 vcc, s54, v%d' % PR, 's_nop 1', 's_cbranch_vccnz %s_spin' % lbl] + (['s_sub_u32 s46, %d, s46' % SPIN, 'v_writelane_b32 v%d, s46, %d' % (STV, 61 + len(slow)//14)] if ST else []) + ['s_branch %s_ok' % lbl]
        return [W(vm=[tag]), 'v_cmp_ne_u32 vcc, s54, v%d' % PR, 's_nop 1', 's_cbranch_vccnz %s_slow' % lbl, lbl + '_ok:']
    extra = {p: [] for p in range(NSEG)}
    PL = o.get('plag', 2)
    for lbl, pset, pchk, sset, schk, vchk in (('L_f1', P_F1SET, P_F1CHK, 8, 8, PV), ('L_f2', P_F2SET, P_F2CHK, 9, 9, PV), ('L_fx', P_XSET, P_XCHK, 10, 11, PX)):
        extra[pset].append(vm('buffer_store_dword v%d, v%d, s[32:35], s%d offen sc1' % (NON, FV, sset)))
        ld = 'buffer_load_dword v%d, v%d, s[32:35], s%d offen sc1' % (PR, vchk, schk)
        pl = 1 if lbl == 'L_fx' else PL
        extra[pchk-pl].append(vm(ld, lbl))
        bar_list[pchk][0:0] = check(lbl, lbl, ld)
    mk = [W(vm=[('scan', 2)]), 's_cmp_ge_u32 s1, %d' % OOB, 's_cbranch_scc1 L_mk_done', 'v_readfirstlane_b32 s46, v%d' % RX, 'L_mk:', 's_add_u32 s46, s46, 1', 's_cmp_eq_u32 s46, 0', 's_cbranch_scc1 L_mk']
    for i in range(12): mk += ['v_cmp_eq_u32 vcc, s46, v%d' % (RX+i), 's_nop 1', 's_cbranch_vccnz L_mk']
    mk += ['v_mov_b32 v%d, s46' % NON, 'L_mk_done:', 's_sub_u32 s1, s1, %d' % (FLG_OFF + 8192)]
    bar_list[2] += mk
    extra[2].append(vm('buffer_store_dword v%d, v%d, s[4:7], s1 offen sc1' % (NON, FV)))
    PN = o.get('pn', 11)
    e2 = 'buffer_load_dword v%d, v1, s[4:7], 0 offen sc1' % PR
    extra[PN].append(vm(e2, 'non'))
    slow += ['L_n_slow:', 's_mov_b32 s46, %d' % SPIN, 'L_n_spin:', e2, 's_waitcnt vmcnt(0)', 'v_readfirstlane_b32 s54, v%d' % PR, 's_sub_u32 s46, s46, 1', 's_cmp_eq_u32 s46, 0', 's_cbranch_scc1 L_n_ok',
             's_cmp_eq_u32 s54, 0', 's_cbranch_scc1 L_n_spin', 's_branch L_n_ok']
    bar_list[PN+3] += [W(vm=['non']), 'v_readfirstlane_b32 s54, v%d' % PR, 's_nop 0', 's_cmp_eq_u32 s54, 0', 's_cbranch_scc1 L_n_slow', 'L_n_ok:', 'v_mov_b32 v%d, s54' % NON, 's_cmp_eq_u32 s36, 0', 's_cselect_b32 s54, s54, 0']
    if o.get('fine'):
        for sg in range(1, NSEG):
            S.back[bar_gap[sg]-1][0:0] = ['v_writelane_b32 v251, s52, %d' % (sg-1), 'v_writelane_b32 v252, s50, %d' % (sg-1)]; bar_list[sg] += ['s_memtime s[52:53]', 's_memrealtime s[50:51]']
    if o.get('touch', 1):
        for k in range(o.get('nt', 6)):
            p = o.get('t0', 14) + k
            extra[p].append(['s_cmp_eq_u32 s39, %d' % k, 's_cbranch_scc1 L_t%d' % k, 'L_t%d_ok:' % k])
            slow += ['L_t%d:' % k, 'buffer_load_dword v2, v%d, s[92:95], 0 offen' % TV, 's_branch L_t%d_ok' % k]
    def mkstore(sreg, c, tag):
        return lambda j, ob: vm('buffer_store_dwordx4 v[%d:%d], v%d, s[32:35], s%d offen offset:%d sc1' % (ob, ob+3, HV, sreg + c//2, (c % 2)*2048 + j*1024), tag)
    epi1 = []; epi2 = []
    for c in range(4): epi1 += silu_chunk(acc, 2*c, lambda j, c=c: OB + ((c % 2)*2+j)*4, TMP + (c % 2)*4, mkstore(58, c, 'hs1'))
    for c in range(3): epi2 += silu_chunk(acc, 8+2*c, lambda j, c=c: OB + ((c % 2)*2+j)*4, TMP + (c % 2)*4, mkstore(60, c, 'hs2'))
    xst = [vm('buffer_store_dwordx4 v[%d:%d], v%d, s[32:35], s%d offen offset:%d sc1' % (ACC+4*i, ACC+4*i+3, XO, 12 + 2*(i//4), 1024*(i % 4)), 'xs') for i in range(8)]
    xld = [vm('buffer_load_dwordx4 v[%d:%d], v%d, s[32:35], s%d offen offset:%d sc1' % (RX+4*i, RX+4*i+3, XO, 13 + 2*(i//4), 1024*(i % 4)), 'xl') for i in range(8)]
    SEP = o.get('sep', 2)
    def isv(x): return isinstance(x, I) and x.kind == 'vm'
    def spread(chain, L, g0, g1, prio, dl=None, sep=None, slack=3, vonly=False):
        w_ = (lambda x: 1 if isv(x) else 0) if vonly else wt
        tot = max(1, sum(w_(x) for x in L)); acc_ = 0; its = []
        for x in L:
            tgt = g0 + int(acc_ * (g1 - g0) / tot)
            if vonly and not isv(x): tgt = max(g0, tgt - 2)
            its.append(S.item(chain, x, g0, min((g1 if dl is None else dl) - 1, tgt + slack), tgt, prio=prio, sep=(SEP if sep is None else sep) if isv(x) else 0, hard=(g1 if dl is None else dl) - 1)); acc_ += w_(x)
        return its
    for p in range(NSEG):
        g0, g1 = max(bar_gap[p], 0), bar_gap[p+1]
        for k, x in enumerate(extra[p]): S.item(('ex', p, k), x, g0, g0+6, prio=1)
        if 1 <= p < 16:
            xr = xrd(p)
            for k, x in enumerate(xr): S.item('x', x, g0, fm[seg_first[p] + 8*(k//2)] - 1 - LAT, prio=1)
        L = []
        for it in per[p]: L += it[2]
        if p == P_XCHK: spread('xl', xld, g0, g0+8, 1, dl=g0+24, sep=1)
        if L: spread('v', L, g0 + 1, g1, 2, dl=g1, vonly=True, slack=o.get('vslack', 3))
    p2s, As, Cs = fm[seg_first[16]], fm[seg_first[32]], fm[seg_first[52]]
    def epi(chain, L, g0, cap, span, lim):
        for g in range(g0, g0 + span): S.cap[g] = max(S.cap[g], cap)
        return spread(chain, L, g0, g0 + span, 3, dl=lim, sep=0, slack=o.get('eslack', 2))
    e1 = epi('e1', epi1, p2s + 1, o.get('e1cap', 5), o.get('e1span', 168), bar_gap[o.get('f1dl', P_F1SET-2)])
    e2_ = epi('e2', epi2, As + 5, o.get('e2cap', 5), o.get('e2span', 128), bar_gap[o.get('f2dl', P_F2SET-1)])
    xs_ = spread('xs', xst, Cs + 5, Cs + 5 + o.get('xspan', 32), 1, dl=bar_gap[P_XSET-1], sep=o.get('xsep', 4))
    bar_wait[P_F1SET].vm.append('hs1'); bar_wait[P_F2SET].vm.append('hs2'); bar_wait[P_XSET].vm.append('xs')
    S.run()
    if o.get('gaps'): print('epi1 ends gap', e1[-1]['gap'], 'lim', bar_gap[P_F1SET], 'epi2 ends', e2_[-1]['gap'], bar_gap[P_F2SET], 'xs ends', xs_[-1]['gap'], file=sys.stderr)
    for w in bar_wait.values():
        if not w.vm: w.vm = None
    P.append(W(vm=('w', 0))); e('s_barrier')
    P += stamp()
    if o.get('fine'): e('s_memtime s[52:53]'); e('s_memrealtime s[50:51]')
    P += xrd(0)
    for n in range(R): P += rd(n)
    P.append(first_wait)
    body = S.emit()
    if ST:
        marks = [seg_first[s] for s in o.get('stseg', (4, 8, 16, 24, 32, 38, 44, 48, 52, 56))] if not o.get('fine') else []
        sts = [stamp() for _ in marks]
        for n, st_ in reversed(list(zip(marks, sts))):
            k = next(i for i, x in enumerate(body) if x is S.mf[fm[n]])
            body[k:k] = st_
    P += [x for x in body if not (isinstance(x, W) and x.vm is None and x.lds is None)]
    if o.get('fine'): e('v_writelane_b32 v251, s52, 59'); e('v_writelane_b32 v252, s50, 59')
    if o.get('gaps'):
        for p in range(NSEG):
            g0, g1 = bar_gap[p], bar_gap[p+1]
            ld = [S.load(g) for g in range(max(g0, 0), min(g1, len(S.mf)))]
            print(p, len(ld), 'sum', sum(ld), 'over2', sum(max(0, x-2) for x in ld), ''.join(str(min(x, 9)) for x in ld), file=sys.stderr)
    P += stamp()
    P.append(W(vm=['xl'])); e('s_nop 6')
    P += stamp()
    k = 0
    for j in range(2):
        for u in range(2):
            ob = OB + (k % 2)*4; k += 1
            for tt in range(2):
                a = acc(4+2*u+tt, j); r = RX + ((2*u+tt)*2+j)*4
                for i in range(4): e('v_add_f32 v%d, v%d, v%d' % (a+i, a+i, r+i))
                e('v_cvt_pk_bf16_f32 v%d, v%d, v%d' % (ob+2*tt, a, a+1)); e('v_cvt_pk_bf16_f32 v%d, v%d, v%d' % (ob+2*tt+1, a+2, a+3))
            e('s_nop 1')
            e('v_permlane16_swap_b32 v%d, v%d' % (ob, ob+2)); e('v_permlane16_swap_b32 v%d, v%d' % (ob+1, ob+3))
            P.append(vm('buffer_store_dwordx4 v[%d:%d], v%d, s[28:31], %s offen offset:%d %s' % (ob, ob+3, OV, 's57' if j else '0', 64*u, o.get('oaux', 'sc1').replace('_', ' '))))
    if ST:
        P += stamp(); e('s_waitcnt vmcnt(0)'); P += stamp()
        if o.get('dbgout') is not None:
            e('s_nop 0'); e('v_readlane_b32 s46, v%d, 0' % STV); e('v_lshlrev_b32 v3, 1, v0'); e('v_and_b32 v4, 1, v0'); e('v_lshl_add_u32 v3, v4, 12, v3'); e('v_subrev_u32 v5, s46, v%d' % STV)
            e('v_cmp_eq_u32 vcc, 0, v0'); e('v_mov_b32 v4, 4096'); e('s_nop 0'); e('v_cndmask_b32 v3, v3, v4, vcc')
            e('s_lshl_b32 s46, s2, 2'); e('s_add_u32 s46, s46, s36'); e('s_cmp_eq_u32 s46, %d' % (4*o['dbgout'])); e('s_cselect_b32 s46, 0, 4096')
            e('buffer_store_dword v5, v3, s[4:7], s46 offen')
        e('s_mov_b32 s34, 0x10000000')
        e('s_lshl_b32 s46, s2, 2'); e('s_add_u32 s46, s46, s36'); e('s_lshl_b32 s46, s46, 8'); e('s_add_u32 s46, s46, %d' % STAMP_OFF)
        e('v_lshlrev_b32 v1, 2, v0'); e('buffer_store_dword v%d, v1, s[32:35], s46 offen' % STV)
        e('s_add_u32 s46, s46, 0x100000'); e('buffer_store_dword v251, v1, s[32:35], s46 offen'); e('s_add_u32 s46, s46, 0x100000'); e('buffer_store_dword v252, v1, s[32:35], s46 offen'); e('s_waitcnt vmcnt(0)')
    if o.get('padto'):
        e('s_waitcnt vmcnt(0)'); e('v_readfirstlane_b32 s46, v253'); e('L_pad:'); e('s_memrealtime s[48:49]'); e('s_waitcnt lgkmcnt(0)'); e('s_sub_u32 s48, s48, s46'); e('s_cmp_lt_u32 s48, %d' % (100*o['padto'])); e('s_cbranch_scc1 L_pad')
    e('L_end:'); e('s_endpgm')
    P += slow
    L = fix_m0(resolve(P))
    for m in check_hazards(L): print('HAZARD', m, file=sys.stderr)
    kd = ['.amdhsa_kernel %s' % NAME, '  .amdhsa_next_free_vgpr 512', '  .amdhsa_next_free_sgpr 102', '  .amdhsa_accum_offset 256',
          '  .amdhsa_group_segment_fixed_size 0', '  .amdhsa_kernarg_size 48', '  .amdhsa_user_sgpr_count 2',
          '  .amdhsa_user_sgpr_kernarg_segment_ptr 1', '  .amdhsa_system_sgpr_workgroup_id_x 1', '  .amdhsa_float_denorm_mode_32 3', '.end_amdhsa_kernel']
    s = HDR + '; @launch grid=(256,1,1) block=(256,1,1) lds=163840\n.amdgcn_target "amdgcn-amd-amdhsa--gfx950"\n.text\n'
    s += '\n'.join(L) + '\n.section .rodata,"a"\n.p2align 6\n' + '\n'.join(kd) + '\n'
    if ST: print('stamps:', nst[0], file=sys.stderr)
    return s

def opts(args):
    o = {}
    for a in args:
        k, v = a.split('=')
        try: v = float(v) if '.' in v else int(v)
        except ValueError: pass
        o[k] = v
    return o
if __name__ == '__main__':
    open(sys.argv[1], 'w').write(gen(opts(sys.argv[2:])))
```

```python
import sys
from asmlib import *

HDR = open('standalone__dense_activation_silu__prompt.s.ref').read().split('; Override launch')[0]
NAME = 'standalone__dense_activation_silu__prompt_kernel'
MF = 'v_mfma_f32_16x16x32_bf16'
LOG2E = 0x3fb8aa3b
WS_BYTES = 0x2000000
XCH_OFF = 0x1000000
FLG_OFF = 0x1800000
STAMP_OFF = 0xF000000
OOB = 0x7000000
ACC, AF, TA1, TA2, XV, WV, XR, HV, TMP, OB = 16, 128, 160, 176, 188, 192, 196, 198, 200, 208
TA3, WV2, OV, XO, NON, PV, PR, FV, PX, SC = 224, 236, 238, 239, 240, 241, 242, 243, 244, 4
RX = 80
STV = 250
S_TAB = 64

def srd(d, ptr, nbytes, add=None):
    o = []
    if add is None:
        o += ['s_mov_b32 s%d, s%d' % (d, ptr), 's_and_b32 s%d, s%d, 0xffff' % (d+1, ptr+1), 's_mov_b32 s%d, %d' % (d+2, nbytes)]
    else:
        o += ['s_add_u32 s%d, s%d, s%d' % (d, ptr, add), 's_addc_u32 s%d, s%d, 0' % (d+1, ptr+1), 's_and_b32 s%d, s%d, 0xffff' % (d+1, d+1),
              's_sub_u32 s%d, %d, s%d' % (d+2, nbytes, add)]
    o.append('s_mov_b32 s%d, 0x20000' % (d+3))
    return o

def fix_m0(lines):
    out = []
    for ln in lines:
        if out and ' lds' in ln and ln.startswith('buffer_load') and ' m0,' in out[-1]: out.append('s_nop 0')
        out.append(ln)
    return out

def silu_chunk(acc_tile, c_t0, outbuf, T, store):
    it = []
    for j in range(2):
        ob = outbuf(j)
        for tt in range(2):
            a = acc_tile(c_t0 + tt, j)
            for i in range(4): it.append('v_mul_f32 v%d, s56, v%d' % (T+i, a+i))
            for i in range(4): it.append(tr('v_exp_f32 v%d, v%d' % (T+i, T+i)))
            for i in range(4): it.append('v_add_f32 v%d, 1.0, v%d' % (T+i, T+i))
            for i in range(4): it.append(tr('v_rcp_f32 v%d, v%d' % (T+i, T+i)))
            for i in range(4): it.append('v_mul_f32 v%d, v%d, v%d' % (T+i, T+i, a+i))
            it.append('v_cvt_pk_bf16_f32 v%d, v%d, v%d' % (ob+2*tt, T, T+1))
            it.append('v_cvt_pk_bf16_f32 v%d, v%d, v%d' % (ob+2*tt+1, T+2, T+3))
        it.append(store(j, ob))
    return it

def gen(o):
    P = []; e = P.append
    ST = o.get('stamps')
    nst = [0]
    def stamp():
        if not ST: return []
        k = nst[0]; nst[0] += 1
        return ['s_memrealtime s[52:53]', 's_waitcnt lgkmcnt(0)', 'v_writelane_b32 v%d, s52, %d' % (STV, 2*k), 's_memtime s[52:53]', 's_waitcnt lgkmcnt(0)', 'v_writelane_b32 v%d, s52, %d' % (STV, 2*k+1)]
    NSLOT = 5; XBASE = 81920
    SPIN = o.get('spin', 200000)
    e('.globl %s' % NAME); e('.p2align 8'); e('.type %s,@function' % NAME); e(NAME + ':')
    if o.get('pad0'): e('s_memrealtime s[100:101]')
    e('s_cmp_ge_u32 s2, 256'); e('s_cbranch_scc1 L_end')
    e('s_load_dwordx4 s[4:7], s[0:1], 0'); e('s_load_dwordx4 s[8:11], s[0:1], 16'); e('s_load_dwordx4 s[12:15], s[0:1], 32')
    if ST: e('v_mov_b32 v%d, 0' % STV)
    if o.get('padto'):
        if not o.get('pad0'): e('s_memrealtime s[100:101]')
        e('s_waitcnt lgkmcnt(0)'); e('v_mov_b32 v253, s100')
    P += stamp()
    e('v_lshrrev_b32 v1, 6, v0'); e('s_and_b32 s46, s2, 7'); e('v_readfirstlane_b32 s36, v1'); e('s_lshr_b32 s47, s2, 3')
    e('s_lshr_b32 s51, s46, 1'); e('s_lshl_b32 s37, s51, 2'); e('s_lshr_b32 s48, s47, 3'); e('s_add_u32 s37, s37, s48')
    e('s_and_b32 s42, s46, 1'); e('s_lshl_b32 s38, s42, 3'); e('s_and_b32 s49, s47, 7'); e('s_add_u32 s38, s38, s49')
    e('s_lshl_b32 s43, s48, 1'); e('s_add_u32 s43, s43, s49'); e('s_and_b32 s52, s51, %d' % o.get('ntrg', 1)); e('s_add_u32 s43, s43, s52'); e('s_and_b32 s43, s43, 7')
    e('v_and_b32 v0, 63, v0')
    rm = o.get('rot', 2)
    if rm == 0: e('s_mov_b32 s39, 0')
    elif rm == 1:
        e('s_lshl_b32 s39, s49, 1'); e('s_lshl_b32 s52, s48, 2'); e('s_add_u32 s39, s39, s52'); e('s_add_u32 s39, s39, s51'); e('s_and_b32 s39, s39, 15')
    elif rm == 2:
        e('s_add_u32 s39, s49, s48'); e('s_and_b32 s39, s39, 1'); e('s_lshl_b32 s39, s39, 2'); e('s_add_u32 s39, s39, s51'); e('s_lshl_b32 s52, s42, 1'); e('s_add_u32 s39, s39, s52'); e('s_lshl_b32 s39, s39, 1'); e('s_and_b32 s39, s39, 15')
    elif rm == 3:
        e('s_add_u32 s39, s49, s48'); e('s_and_b32 s39, s39, 3'); e('s_lshl_b32 s39, s39, 2'); e('s_add_u32 s39, s39, s51'); e('s_lshl_b32 s52, s42, 1'); e('s_add_u32 s39, s39, s52'); e('s_and_b32 s39, s39, 15')
    elif rm == 4:
        e('s_lshl_b32 s39, s42, 1'); e('s_add_u32 s39, s39, s51'); e('s_lshl_b32 s39, s39, 2'); e('s_and_b32 s39, s39, 15')
    e('s_mov_b32 s101, s51')
    e('s_mov_b32 s55, s49')
    e('s_and_b32 s50, s38, 1'); e('s_mul_i32 s51, s38, 448'); e('s_lshl_b32 s52, s50, 6'); e('s_sub_u32 s51, s51, s52')
    e('s_lshl_b32 s52, s50, 8'); e('s_add_u32 s58, s51, s52'); e('s_sub_u32 s59, s51, s52'); e('s_add_u32 s59, s59, 256')
    e('v_lshrrev_b32 v3, 3, v0'); e('v_and_b32 v4, 7, v0')
    e('s_lshl_b32 s46, s37, 2'); e('s_add_u32 s46, s46, s36'); e('s_lshl_b32 s47, s46, 16')
    e('v_lshrrev_b32 v5, 1, v3')
    for p in range(4):
        if p % 2 == 0: e('v_xor_b32 v6, v4, v5')
        else: e('v_or_b32 v7, 4, v5'); e('v_xor_b32 v6, v4, v7')
        e('v_lshlrev_b32 v6, 4, v6'); e('v_lshl_add_u32 v6, v3, 11, v6')
        e('s_add_u32 s48, s47, %d' % (8*p*2048 - 1024*p)); e('v_add_u32 v%d, s48, v6' % (XV+p))
    e('v_lshrrev_b32 v3, 4, v0'); e('v_bfe_u32 v4, v0, 1, 3'); e('v_and_b32 v5, 1, v0'); e('v_lshlrev_b32 v5, 4, v5')
    e('s_mul_i32 s47, s36, %d' % (16*7168)); e('s_movk_i32 s48, 7168'); e('v_mul_lo_u32 v8, v3, s48'); e('v_add_u32 v8, v8, v5')
    for p in range(4):
        if p < 2: e('v_xor_b32 v6, v4, v3')
        else: e('v_or_b32 v7, 4, v3'); e('v_xor_b32 v6, v4, v7')
        e('v_lshl_add_u32 v6, v6, 5, v8')
        e('s_add_u32 s48, s47, %d' % (4*p*7168 - 1024*p)); e('v_add_u32 v%d, s48, v6' % (WV+p))
    e('s_lshl_b32 s44, s36, 12')
    e('s_mul_i32 s45, s36, 20480'); e('s_add_u32 s45, s45, %d' % XBASE)
    e('s_lshl_b32 s40, s39, 7')
    e('s_waitcnt lgkmcnt(0)')
    P += srd(16, 4, 2048*1024*2); P += srd(20, 6, 1024*3584*2, 58); P += srd(24, 6, 1024*3584*2, 59)
    def g1_loads(sg):
        slot = sg % NSLOT; g = []
        cur, nxt = (40, 3)[sg % 2], (3, 40)[sg % 2]
        g.append('s_add_u32 m0, s44, %d' % (slot*16384))
        g.append('s_mul_i32 s41, s%d, 3584' % cur)
        wsrd = 20 if sg < 16 else 24
        for p in range(4): g.append(vm('buffer_load_dwordx4 v%d, s[%d:%d], s41 offen offset:%d lds' % (WV+p, wsrd, wsrd+3, 1024*p), ('w', sg)))
        if sg < 16: g.append('s_add_u32 m0, s45, %d' % (slot*4096))
        g.append('s_add_u32 s%d, s%d, 128' % (nxt, cur))
        if sg < 16:
            for p in range(4): g.append(vm('buffer_load_dwordx4 v%d, s[16:19], s%d offen offset:%d lds' % (XV+p, cur, 1024*p), ('w', sg)))
        g.append('s_and_b32 s%d, s%d, 2047' % (nxt, nxt))
        return g
    P += g1_loads(0)
    if o.get('cpf', 1):
        e('s_getpc_b64 s[46:47]'); e('L_pf:'); e('v_min_u32 v1, 3, v0'); e('v_lshlrev_b32 v1, 7, v1'); e('s_lshr_b32 s48, s2, 3'); e('s_lshl_b32 s48, s48, 2'); e('s_add_u32 s48, s48, s36'); e('s_lshl_b32 s48, s48, 9')
        e('v_add_u32 v1, s48, v1'); e('s_mov_b32 s48, L_end-L_pf'); e('v_min_u32 v9, s48, v1'); e(vm('global_load_dword v2, v9, s[46:47]'))
    P += srd(32, 14, WS_BYTES); P += srd(28, 10, 2048*1024*2)
    e('s_lshl_b32 s46, s43, 8'); e('s_lshl_b32 s47, s42, 7'); e('s_add_u32 s48, s46, s47'); e('s_xor_b32 s47, s47, 128'); e('s_add_u32 s47, s46, s47')
    P += srd(92, 8, 3584*1024*2, 47); P += srd(96, 8, 3584*1024*2, 48); e('s_mov_b32 s39, s47')
    e('v_lshrrev_b32 v3, 4, v0')
    e('v_and_b32 v4, 15, v0'); e('v_lshlrev_b32 v4, 11, v4'); e('v_and_b32 v5, 1, v3'); e('v_lshl_add_u32 v4, v5, 5, v4'); e('v_lshrrev_b32 v5, 1, v3'); e('v_lshl_add_u32 v4, v5, 4, v4')
    e('s_lshl_b32 s46, s37, 2'); e('s_add_u32 s46, s46, s36'); e('s_lshl_b32 s47, s46, 16'); e('s_add_u32 s47, s47, s48'); e('v_add_u32 v%d, s47, v4' % OV)
    e('s_mul_i32 s46, s46, %d' % (112*2048)); e('v_lshlrev_b32 v4, 4, v0'); e('v_add_u32 v%d, s46, v4' % HV)
    e('s_lshl_b32 s46, s36, 13'); e('s_add_u32 s46, s46, %d' % XCH_OFF); e('v_add_u32 v%d, s46, v4' % XO)
    P += srd(4, 12, 256)
    e('s_lshl_b32 s46, s37, 1'); e('s_add_u32 s46, s46, s42'); e('s_lshl_b32 s46, s46, 7'); e('s_add_u32 s46, s46, %d' % FLG_OFF)
    e('s_cmp_eq_u32 s36, 0'); e('s_cselect_b32 s8, s46, %d' % OOB); e('s_add_u32 s9, s8, 4096'); e('s_add_u32 s10, s8, 8192'); e('s_xor_b32 s11, s10, 128')
    e('s_lshl_b32 s12, s2, 15'); e('s_xor_b32 s13, s12, 32768')
    e('s_add_u32 s14, s12, 4096'); e('s_add_u32 s15, s13, 4096')
    e('v_and_b32 v4, 7, v0'); e('v_lshlrev_b32 v%d, 2, v4' % PV)
    e('s_lshl_b32 s46, s55, 2'); e('v_mov_b32 v%d, s46' % PX); e('v_mov_b32 v4, %d' % OOB); e('v_cmp_eq_u32 vcc, 0, v0'); e('s_nop 1'); e('v_cndmask_b32 v%d, v4, v%d, vcc' % (FV, PX))
    e('s_mov_b32 s1, %d' % FLG_OFF); e('s_or_b32 s46, s2, s36'); e('s_cmp_eq_u32 s46, 0'); e('s_cselect_b32 s1, s1, %d' % OOB)
    e('v_lshrrev_b32 v4, 1, v0'); e('v_lshlrev_b32 v4, 7, v4'); e('v_and_b32 v5, 1, v0'); e('v_lshl_add_u32 v1, v5, 4, v4')
    for i in range(3):
        if i: e('s_add_u32 s1, s1, 4096')
        P.append(vm('buffer_load_dwordx4 v[%d:%d], v1, s[32:35], s1 offen sc1' % (RX+4*i, RX+4*i+3), ('scan', i)))
    P += g1_loads(1)
    e('v_lshrrev_b32 v3, 4, v0'); e('v_bfe_u32 v4, v0, 2, 2'); e('v_and_b32 v5, 3, v0')
    e('v_lshl_add_u32 v6, v3, 3, v4'); e('v_lshlrev_b32 v6, 8, v6'); e('v_lshl_add_u32 v6, v5, 3, v6')
    e('v_and_b32 v7, 1, v3'); e('v_lshl_add_u32 v7, v7, 2, v4')
    for t in range(8):
        e('v_xor_b32 v8, %d, v7' % t); e('v_lshl_add_u32 v%d, v8, 5, v6' % (TA1+t)); e('v_add_u32 v%d, 0x10000, v%d' % (TA1+8+t, TA1+t))
    e('s_lshl_b32 s46, s50, 1')
    for t in range(6):
        e('s_add_u32 s47, s46, %d' % t); e('v_xor_b32 v8, s47, v7'); e('v_lshl_add_u32 v%d, v8, 5, v6' % (TA2+t)); e('v_add_u32 v%d, 0x10000, v%d' % (TA2+6+t, TA2+t))
    e('v_lshl_add_u32 v6, v3, 2, v4'); e('v_bfe_u32 v7, v6, 1, 2'); e('v_lshlrev_b32 v6, 7, v6'); e('v_lshl_add_u32 v6, v5, 3, v6')
    for t in range(4):
        e('v_xor_b32 v8, %d, v7' % t); e('v_lshl_add_u32 v%d, v8, 5, v6' % (TA3+t)); e('v_add_u32 v%d, 0x10000, v%d' % (TA3+4+t, TA3+t)); e('v_add_u32 v%d, 0x20000, v%d' % (TA3+8+t, TA3+t))
    e('v_and_b32 v4, 15, v0'); e('v_lshrrev_b32 v5, 1, v4'); e('v_xor_b32 v5, v5, v3')
    e('v_lshlrev_b32 v4, 7, v4'); e('v_add_u32 v4, s45, v4')
    e('v_lshl_add_u32 v%d, v5, 4, v4' % XR); e('v_xor_b32 v5, 4, v5'); e('v_lshl_add_u32 v%d, v5, 4, v4' % (XR+1))
    e('v_lshrrev_b32 v3, 3, v0'); e('v_bfe_u32 v4, v0, 1, 2'); e('v_lshrrev_b32 v5, 1, v3'); e('v_xor_b32 v4, v4, v5')
    e('v_and_b32 v5, 1, v0'); e('v_lshlrev_b32 v5, 4, v5'); e('v_lshl_add_u32 v4, v4, 5, v5'); e('v_lshl_add_u32 v4, v3, 11, v4')
    e('s_lshl_b32 s46, s36, 15'); e('v_add_u32 v%d, s46, v4' % WV2); e('v_add_u32 v%d, %d, v%d' % (WV2+1, 8*2048 - 1024, WV2))
    e('s_lshl_b32 s62, s36, 11')
    e('s_mul_i32 s46, s38, 7'); e('s_mul_i32 s47, s50, 3'); e('s_add_u32 s47, s47, s46'); e('s_lshl_b32 s58, s47, 11'); e('s_add_u32 s59, s58, 4096')
    e('s_lshl_b32 s47, s50, 2'); e('s_sub_u32 s47, s46, s47'); e('s_add_u32 s47, s47, 4'); e('s_lshl_b32 s60, s47, 11'); e('s_add_u32 s61, s60, 4096')
    e('s_mov_b32 s56, 0x%x' % (LOG2E | 0x80000000)); e('s_mov_b32 s57, 32768')
    if o.get('norot2'): e('s_mov_b32 s55, 0')
    e('v_lshrrev_b32 v3, 1, v0'); e('v_add_u32 v3, s55, v3'); e('v_and_b32 v3, 7, v3')
    e('v_lshrrev_b32 v4, 1, v3'); e('v_mul_u32_u24 v4, 7, v4'); e('v_and_b32 v3, 1, v3'); e('v_mul_u32_u24 v3, 5, v3'); e('v_add_u32 v4, v4, v3'); e('s_lshr_b32 s46, s101, 1'); e('s_and_b32 s46, s46, %d' % o.get('ntrg', 1)); e('v_xor_b32 v3, s46, v0'); e('v_and_b32 v3, 1, v3'); e('v_add_u32 v4, v4, v3')
    e('v_subrev_u32 v3, 16, v0'); e('v_and_b32 v3, 63, v3'); e('v_mul_u32_u24 v5, 171, v3'); e('v_lshrrev_b32 v5, 9, v5')
    e('v_mul_u32_u24 v6, 3, v5'); e('v_sub_u32 v3, v3, v6'); e('s_and_b32 s46, s101, %d' % (3*o.get('ntrg', 1))); e('v_add_u32 v3, s46, v3'); e('v_mul_u32_u24 v6, 171, v3'); e('v_lshrrev_b32 v6, 9, v6'); e('v_mul_u32_u24 v6, 3, v6'); e('v_sub_u32 v3, v3, v6'); e('s_lshr_b32 s46, s55, 1'); e('v_add_u32 v5, s46, v5'); e('v_and_b32 v5, 3, v5')
    e('v_mul_u32_u24 v5, 7, v5'); e('v_add3_u32 v5, v5, v3, 2')
    e('v_cmp_gt_u32 vcc, 16, v0'); e('s_mul_i32 s46, s42, 28'); e('s_nop 0'); e('v_cndmask_b32 v4, v5, v4, vcc'); e('v_add_u32 v4, s46, v4'); e('v_lshlrev_b32 v4, 12, v4'); e('s_nop 0')
    for i in range(28): e('v_readlane_b32 s%d, v4, %d' % (S_TAB+i, i))
    e('v_mov_b32 v1, 0')
    TV = 245
    e('s_lshl_b32 s46, s2, 2'); e('s_add_u32 s46, s46, s36'); e('s_mul_i32 s46, s46, %d' % (56*128)); e('s_sub_u32 s46, s46, s39'); e('v_min_u32 v4, 55, v0'); e('v_lshlrev_b32 v4, 7, v4'); e('v_add_u32 v%d, s46, v4' % TV)
    e('s_lshr_b32 s39, s2, 3'); e('s_mul_i32 s46, s39, %d' % (65536 // max(1, o.get('nt', 6)) + 1)); e('s_lshr_b32 s46, s46, 16'); e('s_mul_i32 s46, s46, %d' % max(1, o.get('nt', 6))); e('s_sub_u32 s39, s39, s46')
    ops = []
    units = []
    for i in range(12): units += [(i, 0, 32+i), (i, 1, 32+i)]
    for i in range(12, 28): units.append((i, 0, 44 + (i-12)//2))
    for i in range(12, 28): units.append((i, 1, 52 + (i-12)//2))
    useq = list(range(10, 20)) + [4, 5, 6, 7, 8, 9, 0, 1, 2, 3]
    upos = {(i, h): useq[u % 20] for u, (i, h, s) in enumerate(units)}
    def acc(t, j): return ACC + (t*2+j)*4
    for ps, nt in ((0, 8), (1, 6)):
        for u in range(32):
            sg = ps*16 + u//2
            for t in range(nt):
                off = (sg % NSLOT)*16384 + (u % 2)*8192; areg = (TA1, TA2)[ps] + t
                if off >= 65536: areg += nt; off -= 65536
                ops.append(dict(seg=sg, areg=areg, off=off, d2=1024, tile=ps*8+t, b=u*8, first=(u == 0), u=u, ps=ps, t=t))
    def g2op(i, h, st, t, seg, first):
        off = upos[(i, h)]*8192 + st*4096
        ops.append(dict(seg=seg, areg=TA3 + 4*(off >> 16) + t, off=off & 0xffff, d2=2048, tile=h*4+t, b=((i % 16)*2+st)*8, first=first, ps=2))
    for i in range(12):
        for st in range(2):
            for h in range(2):
                for t in range(4): g2op(i, h, st, t, 32+i, i == 0 and st == 0)
    for h in range(2):
        for i in range(12, 28):
            for st in range(2):
                for t in range(4): g2op(i, h, st, t, (44, 52)[h] + (i-12)//2, False)
    NSEG = 60; R = 8; N = len(ops)
    def rd(n):
        q = ops[n]; f = AF + (n % R)*4
        return [lds('ds_read_b64_tr_b16 v[%d:%d], v%d offset:%d' % (f, f+1, q['areg'], q['off']), ('a', n, 0)),
                lds('ds_read_b64_tr_b16 v[%d:%d], v%d offset:%d' % (f+2, f+3, q['areg'], q['off']+q['d2']), ('a', n, 1))]
    def xrd(sg):
        r = []
        for st in range(2):
            for j in range(2):
                a = ((sg*2+st)*2+j)*4
                r.append(lds('ds_read_b128 a[%d:%d], v%d offset:%d' % (a, a+3, XR+st, (sg % NSLOT)*4096 + 2048*j), ('x', sg*2+st, j)))
        return r
    S = Sched2(); fm = {}
    for n, q in enumerate(ops):
        f = AF + (n % R)*4
        for j in range(2):
            a = acc(q['tile'], j); b = q['b'] + j*4
            c = '0' if q['first'] else 'v[%d:%d]' % (a, a+3)
            i = S.add('%s v[%d:%d], v[%d:%d], a[%d:%d], %s' % (MF, a, a+3, f, f+3, b, b+3, c))
            if j == 0: fm[n] = i
    bar_gap = {}; bar_wait = {}; bar_list = {}
    seg_first = {}
    for n in range(N): seg_first.setdefault(ops[n]['seg'], n)
    WE = o.get('we', 4); LAT = o.get('lat', 6)
    first_wait = None
    for n in range(0, N, WE):
        tags = [('a', n+WE-1, 1)]
        q = ops[n]
        if q['ps'] == 0 and q['t'] == 0: tags += [('x', q['u'], 0), ('x', q['u'], 1)]
        if n: S.back[fm[n]-1].append(W(lds=tags))
        else: first_wait = W(lds=tags)
    for m in range(R, N):
        g = fm[m-R] + 1
        if ops[m]['seg'] != ops[m-1]['seg']:
            sg = ops[m]['seg']
            bar_wait[sg] = W(vm=[]); bar_list[sg] = [bar_wait[sg], 's_barrier']
            S.front[g] = bar_list[sg]; bar_gap[sg] = g
        dl = fm[m - m % WE] - 1 - LAT
        for r in rd(m): S.item('a', r, g, max(g, dl), prio=0)
    bar_gap[0] = -1; bar_gap[NSEG] = len(S.mf)
    plan = []
    for sg in range(2, 32): plan.append([max(0, sg-3), sg, g1_loads(sg), ('w', sg)])
    P_F1SET, P_F1CHK = o.get('f1set', 26), o.get('f1chk', 30)
    P_F2SET, P_F2CHK = o.get('f2set', 38), o.get('f2chk', 42)
    P_XSET, P_XCHK = o.get('xset', 56), o.get('xchk', 59)
    for u, (i, h, seg) in enumerate(units):
        if u < 10: early = o.get('u0', 21)
        elif u < 20: early = 27 + (u-10)//2 + 2
        else: early = units[u-20][2] + 2
        if u >= 40: early = max(early, seg - o.get('clead', 3))
        g = ['s_add_u32 m0, s62, %d' % (upos[(i, h)]*8192), 's_lshl_b32 s63, s%d, 5' % (S_TAB+i)]
        for p in range(2): g.append(vm('buffer_load_dwordx4 v%d, s[%d:%d], s63 offen offset:%d lds' % (WV2+p, 92+4*h, 95+4*h, 1024*p), ('u', u)))
        plan.append([early, seg, g, ('u', u)])
    for i in range(28):
        seg = 32+i if i < 12 else 44 + (i-12)//2
        early = max(16 + i + 2, P_F1CHK) if i < 16 else max(32 + (i-16) + 2, P_F2CHK)
        g = [vm('buffer_load_dwordx4 a[%d:%d], v%d, s[32:35], s%d offen offset:%d sc1' % (((i % 16)*4+k)*4, ((i % 16)*4+k)*4+3, HV, S_TAB+i, 1024*k), ('h', i)) for k in range(4)]
        plan.append([early, seg, g, ('h', i)])
    plan.sort(key=lambda x: (x[1], x[0]))
    def budget(p):
        if p < 2: return o.get('b0', 16)
        if p < 16: return 8
        if p < 32: return o.get('bp2', 8)
        if p < 37: return o.get('ba0', 12)
        if p < 44: return o.get('ba', 8)
        if p < 52: return o.get('bb', 8)
        return o.get('bc', 6)
    LEAD = o.get('lead', 2)
    per = {p: [] for p in range(NSEG)}
    todo = list(plan)
    for p in range(NSEG):
        used = 0; rest = []
        for it in todo:
            nv = sum(1 for x in it[2] if isinstance(x, I))
            if it[0] <= p and (used + nv <= budget(p) or it[1] - LEAD <= p):
                per[p].append(it); used += nv
            else: rest.append(it)
        todo = rest
    assert not todo
    for p in range(NSEG):
        for it in per[p]:
            assert p < it[1], (p, it[3])
            bar_wait[it[1]].vm.append(it[3])
    bar_wait[1].vm.append(('w', 1))
    if o.get('plan'):
        for p in range(NSEG): print(p, [it[3] for it in per[p]], file=sys.stderr)
    slow = []
    def check(lbl, tag, reload):
        nonlocal slow
        slow += [lbl + '_slow:', 's_mov_b32 s46, %d' % SPIN, lbl + '_spin:', reload, 's_waitcnt vmcnt(0)', 's_sub_u32 s46, s46, 1', 's_cmp_eq_u32 s46, 0', 's_cbranch_scc1 %s_ok' % lbl,
                 'v_cmp_ne_u32 vcc, s54, v%d' % PR, 's_nop 1', 's_cbranch_vccnz %s_spin' % lbl] + (['s_sub_u32 s46, %d, s46' % SPIN, 'v_writelane_b32 v%d, s46, %d' % (STV, 61 + len(slow)//14)] if ST else []) + ['s_branch %s_ok' % lbl]
        return [W(vm=[tag]), 'v_cmp_ne_u32 vcc, s54, v%d' % PR, 's_nop 1', 's_cbranch_vccnz %s_slow' % lbl, lbl + '_ok:']
    extra = {p: [] for p in range(NSEG)}
    PL = o.get('plag', 2)
    for lbl, pset, pchk, sset, schk, vchk in (('L_f1', P_F1SET, P_F1CHK, 8, 8, PV), ('L_f2', P_F2SET, P_F2CHK, 9, 9, PV), ('L_fx', P_XSET, P_XCHK, 10, 11, PX)):
        extra[pset].append(vm('buffer_store_dword v%d, v%d, s[32:35], s%d offen sc1' % (NON, FV, sset)))
        ld = 'buffer_load_dword v%d, v%d, s[32:35], s%d offen sc1' % (PR, vchk, schk)
        pl = 1 if lbl == 'L_fx' else PL
        extra[pchk-pl].append(vm(ld, lbl))
        bar_list[pchk][0:0] = check(lbl, lbl, ld)
    mk = [W(vm=[('scan', 2)]), 's_cmp_ge_u32 s1, %d' % OOB, 's_cbranch_scc1 L_mk_done', 'v_readfirstlane_b32 s46, v%d' % RX, 'L_mk:', 's_add_u32 s46, s46, 1', 's_cmp_eq_u32 s46, 0', 's_cbranch_scc1 L_mk']
    for i in range(12): mk += ['v_cmp_eq_u32 vcc, s46, v%d' % (RX+i), 's_nop 1', 's_cbranch_vccnz L_mk']
    mk += ['v_mov_b32 v%d, s46' % NON, 'L_mk_done:', 's_sub_u32 s1, s1, %d' % (FLG_OFF + 8192)]
    bar_list[2] += mk
    extra[2].append(vm('buffer_store_dword v%d, v%d, s[4:7], s1 offen sc1' % (NON, FV)))
    PN = o.get('pn', 11)
    e2 = 'buffer_load_dword v%d, v1, s[4:7], 0 offen sc1' % PR
    extra[PN].append(vm(e2, 'non'))
    slow += ['L_n_slow:', 's_mov_b32 s46, %d' % SPIN, 'L_n_spin:', e2, 's_waitcnt vmcnt(0)', 'v_readfirstlane_b32 s54, v%d' % PR, 's_sub_u32 s46, s46, 1', 's_cmp_eq_u32 s46, 0', 's_cbranch_scc1 L_n_ok',
             's_cmp_eq_u32 s54, 0', 's_cbranch_scc1 L_n_spin', 's_branch L_n_ok']
    bar_list[PN+3] += [W(vm=['non']), 'v_readfirstlane_b32 s54, v%d' % PR, 's_nop 0', 's_cmp_eq_u32 s54, 0', 's_cbranch_scc1 L_n_slow', 'L_n_ok:', 'v_mov_b32 v%d, s54' % NON, 's_cmp_eq_u32 s36, 0', 's_cselect_b32 s54, s54, 0']
    if o.get('fine'):
        for sg in range(1, NSEG):
            S.back[bar_gap[sg]-1][0:0] = ['v_writelane_b32 v251, s52, %d' % (sg-1), 'v_writelane_b32 v252, s50, %d' % (sg-1)]; bar_list[sg] += ['s_memtime s[52:53]', 's_memrealtime s[50:51]']
    if o.get('touch', 1):
        for k in range(o.get('nt', 6)):
            p = o.get('t0', 14) + k
            extra[p].append(['s_cmp_eq_u32 s39, %d' % k, 's_cbranch_scc1 L_t%d' % k, 'L_t%d_ok:' % k])
            slow += ['L_t%d:' % k, 'buffer_load_dword v2, v%d, s[92:95], 0 offen' % TV, 's_branch L_t%d_ok' % k]
    def mkstore(sreg, c, tag):
        return lambda j, ob: vm('buffer_store_dwordx4 v[%d:%d], v%d, s[32:35], s%d offen offset:%d sc1' % (ob, ob+3, HV, sreg + c//2, (c % 2)*2048 + j*1024), tag)
    epi1 = []; epi2 = []
    for c in range(4): epi1 += silu_chunk(acc, 2*c, lambda j, c=c: OB + ((c % 2)*2+j)*4, TMP + (c % 2)*4, mkstore(58, c, 'hs1'))
    for c in range(3): epi2 += silu_chunk(acc, 8+2*c, lambda j, c=c: OB + ((c % 2)*2+j)*4, TMP + (c % 2)*4, mkstore(60, c, 'hs2'))
    xst = [vm('buffer_store_dwordx4 v[%d:%d], v%d, s[32:35], s%d offen offset:%d sc1' % (ACC+4*i, ACC+4*i+3, XO, 12 + 2*(i//4), 1024*(i % 4)), 'xs') for i in range(8)]
    xld = [vm('buffer_load_dwordx4 v[%d:%d], v%d, s[32:35], s%d offen offset:%d sc1' % (RX+4*i, RX+4*i+3, XO, 13 + 2*(i//4), 1024*(i % 4)), 'xl') for i in range(8)]
    SEP = o.get('sep', 2)
    def isv(x): return isinstance(x, I) and x.kind == 'vm'
    def spread(chain, L, g0, g1, prio, dl=None, sep=None, slack=3, vonly=False):
        w_ = (lambda x: 1 if isv(x) else 0) if vonly else wt
        tot = max(1, sum(w_(x) for x in L)); acc_ = 0; its = []
        for x in L:
            tgt = g0 + int(acc_ * (g1 - g0) / tot)
            if vonly and not isv(x): tgt = max(g0, tgt - 2)
            its.append(S.item(chain, x, g0, min((g1 if dl is None else dl) - 1, tgt + slack), tgt, prio=prio, sep=(SEP if sep is None else sep) if isv(x) else 0, hard=(g1 if dl is None else dl) - 1)); acc_ += w_(x)
        return its
    for p in range(NSEG):
        g0, g1 = max(bar_gap[p], 0), bar_gap[p+1]
        for k, x in enumerate(extra[p]): S.item(('ex', p, k), x, g0, g0+6, prio=1)
        if 1 <= p < 16:
            xr = xrd(p)
            for k, x in enumerate(xr): S.item('x', x, g0, fm[seg_first[p] + 8*(k//2)] - 1 - LAT, prio=1)
        L = []
        for it in per[p]: L += it[2]
        if p == P_XCHK: spread('xl', xld, g0, g0+8, 1, dl=g0+24, sep=1)
        if L: spread('v', L, g0 + 1, g1, 2, dl=g1, vonly=True, slack=o.get('vslack', 3))
    p2s, As, Cs = fm[seg_first[16]], fm[seg_first[32]], fm[seg_first[52]]
    def epi(chain, L, g0, cap, span, lim):
        for g in range(g0, g0 + span): S.cap[g] = max(S.cap[g], cap)
        return spread(chain, L, g0, g0 + span, 3, dl=lim, sep=0, slack=o.get('eslack', 2))
    e1 = epi('e1', epi1, p2s + 1, o.get('e1cap', 5), o.get('e1span', 168), bar_gap[o.get('f1dl', P_F1SET-2)])
    e2_ = epi('e2', epi2, As + 5, o.get('e2cap', 5), o.get('e2span', 128), bar_gap[o.get('f2dl', P_F2SET-1)])
    xs_ = spread('xs', xst, Cs + 5, Cs + 5 + o.get('xspan', 32), 1, dl=bar_gap[P_XSET-1], sep=o.get('xsep', 4))
    bar_wait[P_F1SET].vm.append('hs1'); bar_wait[P_F2SET].vm.append('hs2'); bar_wait[P_XSET].vm.append('xs')
    S.run()
    if o.get('gaps'): print('epi1 ends gap', e1[-1]['gap'], 'lim', bar_gap[P_F1SET], 'epi2 ends', e2_[-1]['gap'], bar_gap[P_F2SET], 'xs ends', xs_[-1]['gap'], file=sys.stderr)
    for w in bar_wait.values():
        if not w.vm: w.vm = None
    P.append(W(vm=('w', 0))); e('s_barrier')
    P += stamp()
    if o.get('fine'): e('s_memtime s[52:53]'); e('s_memrealtime s[50:51]')
    P += xrd(0)
    for n in range(R): P += rd(n)
    P.append(first_wait)
    body = S.emit()
    if ST:
        marks = [seg_first[s] for s in o.get('stseg', (4, 8, 16, 24, 32, 38, 44, 48, 52, 56))] if not o.get('fine') else []
        sts = [stamp() for _ in marks]
        for n, st_ in reversed(list(zip(marks, sts))):
            k = next(i for i, x in enumerate(body) if x is S.mf[fm[n]])
            body[k:k] = st_
    P += [x for x in body if not (isinstance(x, W) and x.vm is None and x.lds is None)]
    if o.get('fine'): e('v_writelane_b32 v251, s52, 59'); e('v_writelane_b32 v252, s50, 59')
    if o.get('gaps'):
        for p in range(NSEG):
            g0, g1 = bar_gap[p], bar_gap[p+1]
            ld = [S.load(g) for g in range(max(g0, 0), min(g1, len(S.mf)))]
            print(p, len(ld), 'sum', sum(ld), 'over2', sum(max(0, x-2) for x in ld), ''.join(str(min(x, 9)) for x in ld), file=sys.stderr)
    P += stamp()
    P.append(W(vm=['xl'])); e('s_nop 6')
    P += stamp()
    k = 0
    for j in range(2):
        for u in range(2):
            ob = OB + (k % 2)*4; k += 1
            for tt in range(2):
                a = acc(4+2*u+tt, j); r = RX + ((2*u+tt)*2+j)*4
                for i in range(4): e('v_add_f32 v%d, v%d, v%d' % (a+i, a+i, r+i))
                e('v_cvt_pk_bf16_f32 v%d, v%d, v%d' % (ob+2*tt, a, a+1)); e('v_cvt_pk_bf16_f32 v%d, v%d, v%d' % (ob+2*tt+1, a+2, a+3))
            e('s_nop 1')
            e('v_permlane16_swap_b32 v%d, v%d' % (ob, ob+2)); e('v_permlane16_swap_b32 v%d, v%d' % (ob+1, ob+3))
            P.append(vm('buffer_store_dwordx4 v[%d:%d], v%d, s[28:31], %s offen offset:%d %s' % (ob, ob+3, OV, 's57' if j else '0', 64*u, o.get('oaux', 'sc1').replace('_', ' '))))
    if ST:
        P += stamp(); e('s_waitcnt vmcnt(0)'); P += stamp()
        if o.get('dbgout') is not None:
            e('s_nop 0'); e('v_readlane_b32 s46, v%d, 0' % STV); e('v_lshlrev_b32 v3, 1, v0'); e('v_and_b32 v4, 1, v0'); e('v_lshl_add_u32 v3, v4, 12, v3'); e('v_subrev_u32 v5, s46, v%d' % STV)
            e('v_cmp_eq_u32 vcc, 0, v0'); e('v_mov_b32 v4, 4096'); e('s_nop 0'); e('v_cndmask_b32 v3, v3, v4, vcc')
            e('s_lshl_b32 s46, s2, 2'); e('s_add_u32 s46, s46, s36'); e('s_cmp_eq_u32 s46, %d' % (4*o['dbgout'])); e('s_cselect_b32 s46, 0, 4096')
            e('buffer_store_dword v5, v3, s[4:7], s46 offen')
        e('s_mov_b32 s34, 0x10000000')
        e('s_lshl_b32 s46, s2, 2'); e('s_add_u32 s46, s46, s36'); e('s_lshl_b32 s46, s46, 8'); e('s_add_u32 s46, s46, %d' % STAMP_OFF)
        e('v_lshlrev_b32 v1, 2, v0'); e('buffer_store_dword v%d, v1, s[32:35], s46 offen' % STV)
        e('s_add_u32 s46, s46, 0x100000'); e('buffer_store_dword v251, v1, s[32:35], s46 offen'); e('s_add_u32 s46, s46, 0x100000'); e('buffer_store_dword v252, v1, s[32:35], s46 offen'); e('s_waitcnt vmcnt(0)')
    if o.get('padto'):
        e('s_waitcnt vmcnt(0)'); e('v_readfirstlane_b32 s46, v253')
        if o.get('enc') is not None:
            e('v_readlane_b32 s47, v252, %d' % o['enc']); e('s_nop 3'); e('s_sub_u32 s47, s47, s46'); e('s_add_u32 s46, s46, s47'); e('s_add_u32 s46, s46, s47')
        e('L_pad:'); e('s_memrealtime s[48:49]'); e('s_waitcnt lgkmcnt(0)'); e('s_sub_u32 s48, s48, s46'); e('s_cmp_lt_i32 s48, %d' % (100*o['padto'])); e('s_cbranch_scc1 L_pad')
    e('L_end:'); e('s_endpgm')
    P += slow
    L = fix_m0(resolve(P))
    for m in check_hazards(L): print('HAZARD', m, file=sys.stderr)
    kd = ['.amdhsa_kernel %s' % NAME, '  .amdhsa_next_free_vgpr 512', '  .amdhsa_next_free_sgpr 102', '  .amdhsa_accum_offset 256',
          '  .amdhsa_group_segment_fixed_size 0', '  .amdhsa_kernarg_size 48', '  .amdhsa_user_sgpr_count 2',
          '  .amdhsa_user_sgpr_kernarg_segment_ptr 1', '  .amdhsa_system_sgpr_workgroup_id_x 1', '  .amdhsa_float_denorm_mode_32 3', '.end_amdhsa_kernel']
    s = HDR + '; @launch grid=(256,1,1) block=(256,1,1) lds=163840\n.amdgcn_target "amdgcn-amd-amdhsa--gfx950"\n.text\n'
    s += '\n'.join(L) + '\n.section .rodata,"a"\n.p2align 6\n' + '\n'.join(kd) + '\n'
    if ST: print('stamps:', nst[0], file=sys.stderr)
    return s

def opts(args):
    o = {}
    for a in args:
        k, v = a.split('=')
        try: v = float(v) if '.' in v else int(v)
        except ValueError: pass
        o[k] = v
    return o
if __name__ == '__main__':
    open(sys.argv[1], 'w').write(gen(opts(sys.argv[2:])))
```
